```python
import torch

def _softmax(x, axis=-1):
    return torch.softmax(x, dim=axis)

def _gelu(x):
    return torch.nn.functional.gelu(x, approximate='tanh')

def _silu(x):
    return torch.nn.functional.silu(x)

def _sigmoid(x):
    return torch.sigmoid(x)

def _layernorm(x, axis=-1, eps=1e-05):
    m = x.mean(dim=axis, keepdim=True)
    v = x.var(dim=axis, keepdim=True, unbiased=False)
    return (x - m) / torch.sqrt(v + eps)

def _scatter_add(tgt, idx, src, axis=0):
    return tgt.clone().index_add_(axis, idx, src)

def _segment_sum(src, seg, n):
    out = torch.zeros((n,) + src.shape[1:], dtype=src.dtype)
    return out.index_add_(0, seg, src)

def _pad(x, pw):
    flat = tuple((v for pair in reversed(pw) for v in pair))
    return torch.nn.functional.pad(x, flat)
kernel_name = 'parallel_sum__linear_kernel_hedgehog__mixer_gmlp__prompt'

def setup_inputs():

    _w = lambda a: (lambda t: t.to(torch.bfloat16) if t.is_floating_point() else t)(torch.as_tensor(a))

    def _A_setup():
        B, S, D, H = (1, 2048, 448, 16)
        Dh = D // H
        return {'x': _w((lambda *s: torch.randn(*s, dtype=torch.bfloat16) * 0.05)(B, S, D)), 'wqkv': _w((lambda *s: torch.randn(*s, dtype=torch.bfloat16) * 0.8)(D, 3 * D)), 'w_phi': _w((lambda *s: torch.randn(*s, dtype=torch.bfloat16) * 0.8)(H, Dh, Dh) * Dh ** (-0.5)), 'wo': _w((lambda *s: torch.randn(*s, dtype=torch.bfloat16) * 0.1)(D, D))}
    _A_in = _A_setup()

    def _B_setup():
        B, S, D, F = (1, 2048, 448, 1792)
        Fh = F // 2
        return {'x': _w((lambda *s: torch.randn(*s, dtype=torch.bfloat16) * 0.05)(B, S, D)), 'w_in': _w((lambda *s: torch.randn(*s, dtype=torch.bfloat16) * 0.4)(D, 2 * Fh)), 'w_sp': _w(0.01 * (lambda *s: torch.randn(*s, dtype=torch.bfloat16) * 0.4)(S, S)), 'b_sp': _w(1.0 + 0.01 * (lambda *s: torch.randn(*s, dtype=torch.bfloat16) * 0.05)(S)), 'w_out': _w((lambda *s: torch.randn(*s, dtype=torch.bfloat16) * 0.05)(Fh, D))}
    _B_in = _B_setup()
    return {'A_x': _A_in['x'], 'A_wqkv': _A_in['wqkv'], 'A_w_phi': _A_in['w_phi'], 'A_wo': _A_in['wo'], 'B_x': _B_in['x'], 'B_w_in': _B_in['w_in'], 'B_w_sp': _B_in['w_sp'], 'B_b_sp': _B_in['b_sp'], 'B_w_out': _B_in['w_out']}

def reference(A_x, A_wqkv, A_w_phi, A_wo, B_x, B_w_in, B_w_sp, B_b_sp, B_w_out):

    def _A_ref(x, wqkv, w_phi, wo):
        B, S, D = x.shape
        H = 16
        Dh = D // H
        qkv = (lambda x, *d: x.permute(*d))((x @ wqkv).reshape(B, S, 3, H, Dh), 2, 0, 3, 1, 4)
        q, k, v = (qkv[0], qkv[1], qkv[2])
        pq = torch.einsum('bhsd,hdf->bhsf', q, w_phi)
        pk = torch.einsum('bhsd,hdf->bhsf', k, w_phi)
        phi_q = torch.concatenate([_softmax(pq, axis=-1), _softmax(-pq, axis=-1)], axis=-1)
        phi_k = torch.concatenate([_softmax(pk, axis=-1), _softmax(-pk, axis=-1)], axis=-1)
        kv = torch.einsum('bhsf,bhsd->bhfd', phi_k, v)
        z = torch.einsum('bhsf->bhf', phi_k)
        num = torch.einsum('bhqf,bhfd->bhqd', phi_q, kv)
        den = torch.einsum('bhqf,bhf->bhq', phi_q, z)[..., None] + 1e-06
        o = num / den
        return (lambda x, *d: x.permute(*d))(o, 0, 2, 1, 3).reshape(B, S, D) @ wo

    def _B_ref(x, w_in, w_sp, b_sp, w_out):
        B, S, D = x.shape
        F = w_in.shape[-1]
        Fh = F // 2
        z = _gelu(torch.einsum('bsd,df->bsf', x, w_in))
        z1 = z[..., :Fh].clone()
        z2 = _layernorm(z[..., Fh:], axis=-1)
        g = torch.einsum('ts,bsf->btf', w_sp, z2) + b_sp[None, :, None]
        return torch.einsum('bsf,fd->bsd', z1 * g, w_out)
    x = A_x
    xn = _layernorm(x, axis=-1)
    return x + _A_ref(xn, A_wqkv, A_w_phi, A_wo) + _B_ref(xn, B_w_in, B_w_sp, B_b_sp, B_w_out)
```

```python
import sys, struct

def f2u(x):
    return struct.unpack('<I', struct.pack('<f', x))[0]

class Asm:
    def __init__(s):
        s.L = []
        s.uid = 0
    def __call__(s, t):
        s.L.append('    ' + t)
    def lab(s, l):
        s.L.append(l + ':')
    def newlab(s, p='L'):
        s.uid += 1
        return f'{p}_{s.uid}'
    def nop(s, n):
        while n > 0:
            k = min(n, 16)
            s(f's_nop {k-1}')
            n -= k

class Regs:
    def __init__(s, start=0):
        s.n = start
        s.hi = start
    def alloc(s, n=1, align=1):
        s.n = (s.n + align - 1) // align * align
        r = s.n
        s.n += n
        s.hi = max(s.hi, s.n)
        return r

def vr(b, n=1):
    return f'v{b}' if n == 1 else f'v[{b}:{b+n-1}]'
def sr(b, n=1):
    return f's{b}' if n == 1 else f's[{b}:{b+n-1}]'

S = 2048; D = 448; H = 16; DH = 28; FH = 896
WS_PHIQ = 0
WS_PHIKT = WS_PHIQ + S*H*64*2
WS_VT = WS_PHIKT + H*64*S*2
WS_Z1 = WS_VT + H*32*S*2
WS_Z2 = WS_Z1 + S*FH*2
WS_U = WS_Z2 + S*FH*2
WS_ST = WS_U + S*FH*2
WS_KVT = WS_ST + S*8*2*4
WS_END = WS_KVT + H*32*64*2
WS_SIZE = 268435456

L2E = 1.4426950408889634
GELU_K = -2.0 * 0.7978845608028654 * L2E
OOB = 0x40000000

def srd(a, d, lo, hi, nbytes):
    a(f's_mov_b32 s{d}, s{lo}')
    a(f's_and_b32 s{d+1}, s{hi}, 0xffff')
    a(f's_mov_b32 s{d+2}, {nbytes}')
    a(f's_mov_b32 s{d+3}, 0x00020000')

def bf16_round(a, dst, src):
    a(f'v_cvt_pk_bf16_f32 v{dst}, v{src}, v{src}')
    a(f'v_lshlrev_b32 v{dst}, 16, v{dst}')

def xhalf(a, x, t0, t1, op, dst):
    a(f'v_mov_b32 v{t0}, v{x}')
    a(f'v_mov_b32 v{t1}, v{x}')
    a('s_nop 1')
    a(f'v_permlane32_swap_b32 v{t0}, v{t1}')
    a('s_nop 1')
    a(f'{op} v{dst}, v{t0}, v{t1}')

def header(a, name):
    a.L.append('.p2align 8')
    a.L.append(f'.globl {name}')
    a.L.append(f'.type {name},@function')
    a.lab(name)

def descriptor(name, nv, ns=102):
    nv8 = (nv + 7) // 8 * 8
    acc = (nv + 3) // 4 * 4
    return f""".amdhsa_kernel {name}
  .amdhsa_next_free_vgpr {nv8}
  .amdhsa_next_free_sgpr {ns}
  .amdhsa_accum_offset {max(acc,4) if acc<=nv8 else nv8}
  .amdhsa_group_segment_fixed_size 0
  .amdhsa_kernarg_size 96
  .amdhsa_user_sgpr_count 2
  .amdhsa_user_sgpr_kernarg_segment_ptr 1
  .amdhsa_system_sgpr_workgroup_id_x 1
.end_amdhsa_kernel
"""

K1_WB = 14336
K1_XT = 2 * K1_WB
K1_XS = 912
K1_DUMMY = K1_XT + 128 * K1_XS
K1_LDS = K1_DUMMY + 128

def gen_k1(a):
    name = 'k1_proj_kernel'
    header(a, name)
    END = 'k1_end'
    a('s_cmp_ge_u32 s2, 224')
    a(f's_cbranch_scc1 {END}')
    a('s_load_dwordx2 s[24:25], s[0:1], 0')
    a('s_load_dwordx2 s[26:27], s[0:1], 8')
    a('s_load_dwordx2 s[28:29], s[0:1], 16')
    a('s_load_dwordx2 s[30:31], s[0:1], 40')
    a('s_load_dwordx2 s[32:33], s[0:1], 88')
    a('s_and_b32 s20, s2, 7')
    a('s_lshl_b32 s20, s20, 1')
    a('s_lshr_b32 s21, s2, 3')
    a('s_and_b32 s34, s21, 1')
    a('s_add_u32 s20, s20, s34')
    a('s_lshr_b32 s21, s2, 4')
    a('s_waitcnt lgkmcnt(0)')
    srd(a, 4, 24, 25, S*D*2)
    srd(a, 12, 28, 29, H*DH*DH*2)
    srd(a, 16, 32, 33, WS_SIZE)
    a('s_cmp_lt_u32 s21, 6')
    a('s_mov_b32 s22, 2688')
    a('s_cselect_b32 s22, s22, 3584')
    a('s_cselect_b32 s34, s26, s30')
    a('s_cselect_b32 s35, s27, s31')
    a(f's_mov_b32 s36, {D*3*D*2}')
    a(f's_cselect_b32 s36, s36, {D*4*D*2}')
    a('s_cselect_b32 s37, 0, 6')
    a('s_sub_u32 s37, s21, s37')
    a('s_mul_i32 s37, s37, 448')
    a('s_add_u32 s8, s34, s37')
    a('s_addc_u32 s9, s35, 0')
    a('s_and_b32 s9, s9, 0xffff')
    a('s_sub_u32 s10, s36, s37')
    a('s_mov_b32 s11, 0x00020000')

    R = Regs(1)
    vLane = R.alloc()
    vT = [R.alloc() for _ in range(8)]
    vWg = [R.alloc(), R.alloc()]
    vWl = [R.alloc(), R.alloc()]
    vAad = R.alloc()
    vBad = R.alloc()
    vStg = [R.alloc(8, 4), R.alloc(8, 4)]
    vAcc = R.alloc(64, 4)
    vFr = R.alloc(40, 4)
    vPhi = R.alloc(16, 4)
    vE = R.alloc(48, 4)

    a(f'v_and_b32 v{vLane}, 63, v0')
    a(f'v_lshrrev_b32 v{vT[0]}, 6, v0')
    a('s_nop 0')
    a(f'v_readfirstlane_b32 s23, v{vT[0]}')
    for j in range(2):
        c = vT[0]; row = vT[1]; col = vT[2]
        a(f'v_add_u32 v{c}, {512*j}, v0')
        a(f'v_mul_u32_u24 v{row}, 2341, v{c}')
        a(f'v_lshrrev_b32 v{row}, 16, v{row}')
        a(f'v_mul_u32_u24 v{col}, 28, v{row}')
        a(f'v_sub_u32 v{col}, v{c}, v{col}')
        a(f'v_lshlrev_b32 v{col}, 4, v{col}')
        a(f'v_mul_lo_u32 v{vWg[j]}, v{row}, s22')
        a(f'v_add_u32 v{vWg[j]}, v{vWg[j]}, v{col}')
        a(f'v_mul_u32_u24 v{vWl[j]}, 448, v{row}')
        a(f'v_add_u32 v{vWl[j]}, v{vWl[j]}, v{col}')
        if j == 1:
            a(f'v_cmp_gt_u32 vcc, 896, v{c}')
            a(f'v_mov_b32 v{vT[3]}, {OOB}')
            a(f'v_mov_b32 v{vT[4]}, {K1_DUMMY}')
            a(f'v_cndmask_b32 v{vWg[j]}, v{vT[3]}, v{vWg[j]}, vcc')
            a(f'v_cndmask_b32 v{vWl[j]}, v{vT[4]}, v{vWl[j]}, vcc')

    def w_issue(blk):
        st = vStg[blk % 2]
        a(f's_mul_i32 s38, s22, {32*blk}')
        for j in range(2):
            a(f'buffer_load_dwordx4 {vr(st+4*j,4)}, v{vWg[j]}, s[8:11], s38 offen')
    def w_write(blk):
        st = vStg[blk % 2]
        for j in range(2):
            a(f'ds_write_b128 v{vWl[j]}, {vr(st+4*j,4)} offset:{(blk%2)*K1_WB}')

    w_issue(0)
    w_issue(1)

    vX = vAcc
    row = vT[0]; qd = vT[1]; xo = vT[2]; lo = vT[3]
    a(f'v_lshrrev_b32 v{row}, 2, v0')
    a(f'v_and_b32 v{qd}, 3, v0')
    a(f'v_mul_u32_u24 v{xo}, 896, v{row}')
    a(f'v_mul_u32_u24 v{lo}, {K1_XS}, v{row}')
    a(f'v_mul_u32_u24 v{qd}, 224, v{qd}')
    a(f'v_add_u32 v{xo}, v{xo}, v{qd}')
    a(f'v_add_u32 v{lo}, v{lo}, v{qd}')
    a(f'v_add_u32 v{lo}, {K1_XT}, v{lo}')
    a('s_mul_i32 s38, s20, 114688')
    for j in range(14):
        a(f'buffer_load_dwordx4 {vr(vX+4*j,4)}, v{xo}, s[4:7], s38 offen offset:{16*j}')
    a('s_and_b32 s39, s21, 1')
    a('s_lshl_b32 s39, s39, 3')
    a('s_lshr_b32 s40, s23, 1')
    a('s_lshl_b32 s40, s40, 1')
    a('s_add_u32 s39, s39, s40')
    a('s_mul_i32 s40, s39, 1568')
    f_ = vT[4]; hh = vT[5]; po = vT[6]; po2 = vT[7]
    a(f'v_and_b32 v{f_}, 31, v{vLane}')
    a(f'v_lshrrev_b32 v{hh}, 5, v{vLane}')
    a(f'v_mul_u32_u24 v{po}, 224, v{hh}')
    a(f'v_lshl_add_u32 v{po}, v{f_}, 1, v{po}')
    a(f'v_mov_b32 v{po2}, {OOB}')
    a(f'v_cmp_gt_u32 vcc, 28, v{f_}')
    a('s_nop 1')
    a(f'v_cndmask_b32 v{po}, v{po2}, v{po}, vcc')
    a(f'v_cmp_eq_u32 vcc, 0, v{hh}')
    a('s_nop 1')
    a(f'v_cndmask_b32 v{po2}, v{po2}, v{po}, vcc')
    for ah in range(2):
        for ks in range(2):
            for jj in range(4):
                dreg = vPhi + ah*8 + ks*4 + jj
                for half in range(2):
                    j = 2*jj + half
                    dbase = 16*ks + 8*(j >> 2) + (j & 3)
                    addr = po2 if dbase >= 24 else po
                    a(f'buffer_load_ushort v{vFr + 2*(dreg-vPhi) + half}, v{addr}, s[12:15], s40 offen offset:{ah*1568 + dbase*56}')
    sm = vE; sq = vE+1; t0 = vE+2; t1 = vE+3; ones = vE+4
    a(f'v_mov_b32 v{sm}, 0')
    a(f'v_mov_b32 v{sq}, 0')
    a(f'v_mov_b32 v{ones}, 0x3f803f80')
    a('s_waitcnt vmcnt(32)')
    for j in range(56):
        a(f'v_dot2c_f32_bf16 v{sm}, v{vX+j}, v{ones}')
        a(f'v_dot2c_f32_bf16 v{sq}, v{vX+j}, v{vX+j}')
    a('s_nop 3')
    for perm in ('[1,0,3,2]', '[2,3,0,1]'):
        a(f'v_add_f32_dpp v{t0}, v{sm}, v{sm} quad_perm:{perm} row_mask:0xf bank_mask:0xf')
        a(f'v_add_f32_dpp v{t1}, v{sq}, v{sq} quad_perm:{perm} row_mask:0xf bank_mask:0xf')
        a(f'v_mov_b32 v{sm}, v{t0}')
        a(f'v_mov_b32 v{sq}, v{t1}')
        a('s_nop 1')
    inv = f2u(1.0/448.0)
    a(f'v_mul_f32 v{sm}, {inv}, v{sm}')
    a(f'v_mul_f32 v{sq}, {inv}, v{sq}')
    a(f'v_fma_f32 v{sq}, -v{sm}, v{sm}, v{sq}')
    a(f'v_max_f32 v{sq}, 0, v{sq}')
    bf16_round(a, sm, sm)
    bf16_round(a, sq, sq)
    a(f'v_add_f32 v{sq}, {f2u(1e-5)}, v{sq}')
    bf16_round(a, sq, sq)
    a(f'v_sqrt_f32 v{sq}, v{sq}')
    a('s_nop 0')
    bf16_round(a, sq, sq)
    a(f'v_rcp_f32 v{sq}, v{sq}')
    a('s_nop 0')
    a(f'v_mul_f32 v{sm}, v{sm}, v{sq}')
    for j in range(56):
        x = vX + j
        a(f'v_lshlrev_b32 v{t0}, 16, v{x}')
        a(f'v_and_b32 v{t1}, 0xffff0000, v{x}')
        a(f'v_fma_f32 v{t0}, v{t0}, v{sq}, -v{sm}')
        a(f'v_fma_f32 v{t1}, v{t1}, v{sq}, -v{sm}')
        a(f'v_cvt_pk_bf16_f32 v{x}, v{t0}, v{t1}')
    for j in range(14):
        a(f'ds_write_b128 v{lo}, {vr(vX+4*j,4)} offset:{16*j}')
    a('s_waitcnt vmcnt(0)')
    w_write(0)
    for i in range(16):
        a(f'v_lshl_or_b32 v{vPhi+i}, v{vFr+2*i+1}, 16, v{vFr+2*i}')
    G1 = vT[0]; G2 = vT[1]; rr = vT[2]; cc = vT[3]
    a(f'v_bfe_u32 v{G1}, v{vLane}, 4, 1')
    a(f'v_lshrrev_b32 v{G2}, 5, v{vLane}')
    a(f'v_bfe_u32 v{rr}, v{vLane}, 2, 2')
    a(f'v_and_b32 v{cc}, 3, v{vLane}')
    a(f'v_lshl_add_u32 v{rr}, v{G2}, 3, v{rr}')
    a(f'v_mul_u32_u24 v{vAad}, 448, v{rr}')
    a(f'v_lshl_add_u32 v{cc}, v{G1}, 2, v{cc}')
    a(f'v_lshl_add_u32 v{vAad}, v{cc}, 3, v{vAad}')
    a(f'v_and_b32 v{vT[4]}, 31, v{vLane}')
    a(f'v_mul_u32_u24 v{vBad}, {K1_XS}, v{vT[4]}')
    a(f'v_lshl_add_u32 v{vBad}, v{G2}, 4, v{vBad}')
    a(f'v_add_u32 v{vBad}, {K1_XT}, v{vBad}')
    for i in range(64):
        a(f'v_mov_b32 v{vAcc+i}, 0')
    a('s_waitcnt lgkmcnt(0)')
    a('s_barrier')

    LZ = 'k1_zpath'
    a('s_cmp_ge_u32 s21, 6')
    a(f's_cbranch_scc1 {LZ}')

    def mainloop(kind):
        if kind == 'h':
            a('s_lshr_b32 s40, s23, 1')
            a('s_mul_i32 s40, s40, 112')
            a('s_and_b32 s41, s23, 1')
            a(f's_mul_i32 s41, s41, {64*K1_XS}')
            nA, nB = 2, 2
            aoff = [0, 56]; boff = [0, 32*K1_XS]
        else:
            a('s_lshr_b32 s40, s23, 2')
            a('s_mul_i32 s40, s40, 256')
            a('s_and_b32 s41, s23, 3')
            a(f's_mul_i32 s41, s41, {32*K1_XS}')
            nA, nB = 4, 1
            aoff = [0, 64, 128, 192]; boff = [0]
        va = vT[5]; vb = vT[6]
        a(f'v_add_u32 v{va}, s40, v{vAad}')
        a(f'v_add_u32 v{vb}, s41, v{vBad}')
        per = nA + nB
        for blk in range(14):
            if blk + 2 < 14:
                w_issue(blk + 2)
            for ks in range(2):
                fb = vFr + ks*20
                for i in range(nA):
                    for half in range(2):
                        off = (blk % 2)*K1_WB + (16*ks + 4*half)*448 + aoff[i]
                        a(f'ds_read_b64_tr_b16 {vr(fb+4*i+2*half,2)}, v{va} offset:{off}')
                for i in range(nB):
                    off = boff[i] + blk*64 + ks*32
                    a(f'ds_read_b128 {vr(fb+4*(nA+i),4)}, v{vb} offset:{off}')
            nrd = 2*nA + nB
            for ks in range(2):
                a(f's_waitcnt lgkmcnt({nrd if ks == 0 else 0})')
                fb = vFr + ks*20
                for i in range(nA):
                    for jb in range(nB):
                        t = i*nB + jb
                        a(f'v_mfma_f32_32x32x16_bf16 {vr(vAcc+16*t,16)}, {vr(fb+4*i,4)}, {vr(fb+4*(nA+jb),4)}, {vr(vAcc+16*t,16)}')
            if blk + 1 < 14:
                a(f's_waitcnt vmcnt({2 if blk+2 < 14 else 0})')
                w_write(blk + 1)
                a('s_waitcnt lgkmcnt(0)')
                a('s_barrier')
        a.nop(16)

    mainloop('h')
    a('s_mov_b32 s42, 0')
    a('s_mov_b32 s43, -1')
    tl = vT[0]; hh = vT[1]
    a(f'v_and_b32 v{tl}, 31, v{vLane}')
    a(f'v_lshrrev_b32 v{hh}, 5, v{vLane}')
    a('s_lshl_b32 s40, s20, 7')
    a('s_and_b32 s41, s23, 1')
    a('s_lshl_b32 s41, s41, 6')
    a('s_add_u32 s40, s40, s41')
    a(f'v_add_u32 v{tl}, s40, v{tl}')
    LV = 'k1_vpath'
    a('s_cmp_ge_u32 s21, 4')
    a(f's_cbranch_scc1 {LV}')
    LK = 'k1_kstore'
    P = vE
    p = vE + 8
    mx = vE + 24; mn = vE + 25; u0 = vE + 26; u1 = vE + 27; sp = vE + 28; sn = vE + 29
    en = vFr
    ep = vFr + 16
    T2 = vE + 32
    l2e = f2u(L2E)
    a(f's_mov_b32 s44, {l2e}')
    qaddr = vT[2]; kaddr = vT[3]
    a(f'v_lshlrev_b32 v{qaddr}, 11, v{tl}')
    a(f'v_lshl_add_u32 v{qaddr}, v{hh}, 3, v{qaddr}')
    a('s_lshl_b32 s45, s39, 7')
    a(f'v_add_u32 v{qaddr}, s45, v{qaddr}')
    a(f'v_lshlrev_b32 v{kaddr}, 14, v{hh}')
    a(f'v_lshl_add_u32 v{kaddr}, v{tl}, 1, v{kaddr}')
    a('s_lshl_b32 s45, s39, 18')
    a(f'v_add_u32 v{kaddr}, s45, v{kaddr}')
    a('s_waitcnt vmcnt(0)')
    for ah in range(2):
        for b in range(2):
            acc = vAcc + 16*(ah*2+b)
            for j in range(8):
                a(f'v_cvt_pk_bf16_f32 v{P+j}, v{acc+2*j}, v{acc+2*j+1}')
            a(f'v_cndmask_b32 v{P+6}, v{P+6}, 0, s[42:43]')
            a(f'v_cndmask_b32 v{P+7}, v{P+7}, 0, s[42:43]')
            a('s_nop 1')
            a(f'v_mfma_f32_32x32x16_bf16 {vr(T2,16)}, {vr(vPhi+ah*8,4)}, {vr(P,4)}, 0')
            a(f'v_mfma_f32_32x32x16_bf16 {vr(T2,16)}, {vr(vPhi+ah*8+4,4)}, {vr(P+4,4)}, {vr(T2,16)}')
            a.nop(16)
            for j in range(8):
                a(f'v_cvt_pk_bf16_f32 v{u0}, v{T2+2*j}, v{T2+2*j+1}')
                a(f'v_lshlrev_b32 v{p+2*j}, 16, v{u0}')
                a(f'v_and_b32 v{p+2*j+1}, 0xffff0000, v{u0}')
            for j in range(12, 16):
                a(f'v_cndmask_b32 v{p+j}, v{p+j}, v{p+11}, s[42:43]')
            a(f'v_max3_f32 v{mx}, v{p}, v{p+1}, v{p+2}')
            a(f'v_min3_f32 v{mn}, v{p}, v{p+1}, v{p+2}')
            for j in range(3, 15, 2):
                a(f'v_max3_f32 v{mx}, v{mx}, v{p+j}, v{p+j+1}')
                a(f'v_min3_f32 v{mn}, v{mn}, v{p+j}, v{p+j+1}')
            a(f'v_max_f32 v{mx}, v{mx}, v{p+15}')
            a(f'v_min_f32 v{mn}, v{mn}, v{p+15}')
            xhalf(a, mx, u0, u1, 'v_max_f32', mx)
            xhalf(a, mn, u0, u1, 'v_min_f32', mn)
            a(f'v_mul_f32 v{mx}, s44, v{mx}')
            a(f'v_mul_f32 v{mn}, s44, v{mn}')
            for j in range(16):
                a(f'v_fma_f32 v{ep+j}, v{p+j}, s44, -v{mx}')
                a(f'v_fma_f32 v{en+j}, -v{p+j}, s44, v{mn}')
            for j in range(16):
                a(f'v_exp_f32 v{ep+j}, v{ep+j}')
                a(f'v_exp_f32 v{en+j}, v{en+j}')
            a('s_nop 0')
            for j in range(12, 16):
                a(f'v_cndmask_b32 v{ep+j}, v{ep+j}, 0, s[42:43]')
                a(f'v_cndmask_b32 v{en+j}, v{en+j}, 0, s[42:43]')
            a(f'v_add_f32 v{sp}, v{ep}, v{ep+1}')
            a(f'v_add_f32 v{sn}, v{en}, v{en+1}')
            for j in range(2, 16):
                a(f'v_add_f32 v{sp}, v{sp}, v{ep+j}')
                a(f'v_add_f32 v{sn}, v{sn}, v{en+j}')
            xhalf(a, sp, u0, u1, 'v_add_f32', sp)
            xhalf(a, sn, u0, u1, 'v_add_f32', sn)
            a(f'v_rcp_f32 v{sp}, v{sp}')
            a(f'v_rcp_f32 v{sn}, v{sn}')
            a('s_nop 0')
            for j in range(16):
                a(f'v_mul_f32 v{ep+j}, v{ep+j}, v{sp}')
                a(f'v_mul_f32 v{en+j}, v{en+j}, v{sn}')
            for j in range(8):
                a(f'v_cvt_pk_bf16_f32 v{ep+j}, v{ep+2*j}, v{ep+2*j+1}')
                a(f'v_cvt_pk_bf16_f32 v{en+j}, v{en+2*j}, v{en+2*j+1}')
            import os
            if os.environ.get('DBGP'):
                for j in range(8):
                    a(f'v_cvt_pk_bf16_f32 v{ep+j}, v{p+2*j}, v{p+2*j+1}')
                    a(f'v_mov_b32 v{en+j}, v{P+j}')
            lk = a.newlab('k1k'); ld = a.newlab('k1d')
            a('s_cmp_ge_u32 s21, 2')
            a(f's_cbranch_scc1 {lk}')
            for q in range(4):
                for neg, src in ((0, ep), (1, en)):
                    off = ah*128 + q*16 + neg*64 + b*32*2048
                    a(f's_mov_b32 s46, {WS_PHIQ + off}')
                    a(f'buffer_store_dwordx2 {vr(src+2*q,2)}, v{qaddr}, s[16:19], s46 offen')
            a(f's_branch {ld}')
            a.lab(lk)
            for q in range(4):
                for neg, src in ((0, ep), (1, en)):
                    for i in range(4):
                        f = neg*32 + 8*q + i
                        off = WS_PHIKT + (ah*64 + f)*4096 + b*64
                        a(f's_mov_b32 s46, {off}')
                        op = 'buffer_store_short' if i % 2 == 0 else 'buffer_store_short_d16_hi'
                        a(f'{op} v{src+2*q+i//2}, v{kaddr}, s[16:19], s46 offen')
            a.lab(ld)
    a(f's_branch {END}')
    a.lab(LV)
    vaddr = vT[2]
    a(f'v_lshlrev_b32 v{vaddr}, 14, v{hh}')
    a(f'v_lshl_add_u32 v{vaddr}, v{tl}, 1, v{vaddr}')
    a('s_lshl_b32 s45, s39, 17')
    a(f'v_add_u32 v{vaddr}, s45, v{vaddr}')
    for ah in range(2):
        for b in range(2):
            acc = vAcc + 16*(ah*2+b)
            for j in range(8):
                a(f'v_cvt_pk_bf16_f32 v{vE+j}, v{acc+2*j}, v{acc+2*j+1}')
            for q in range(4):
                for i in range(4):
                    d = 8*q + i
                    off = WS_VT + (ah*32 + d)*4096 + b*64
                    a(f's_mov_b32 s46, {off}')
                    op = 'buffer_store_short' if i % 2 == 0 else 'buffer_store_short_d16_hi'
                    a(f'{op} v{vE+2*q+i//2}, v{vaddr}, s[16:19], s46 offen')
    a(f's_branch {END}')

    a.lab(LZ)
    mainloop('z')
    tl = vT[0]; hh = vT[1]; zaddr = vT[2]; staddr = vT[3]
    a(f'v_and_b32 v{tl}, 31, v{vLane}')
    a(f'v_lshrrev_b32 v{hh}, 5, v{vLane}')
    a('s_lshl_b32 s40, s20, 7')
    a('s_and_b32 s41, s23, 3')
    a('s_lshl_b32 s41, s41, 5')
    a('s_add_u32 s40, s40, s41')
    a(f'v_add_u32 v{tl}, s40, v{tl}')
    a('s_sub_u32 s41, s21, 6')
    a('s_and_b32 s45, s41, 3')
    a('s_mul_i32 s45, s45, 448')
    a('s_lshr_b32 s46, s23, 2')
    a('s_lshl_b32 s46, s46, 8')
    a('s_add_u32 s45, s45, s46')
    a('s_cmp_ge_u32 s41, 4')
    a(f's_mov_b32 s46, {WS_Z2}')
    a(f's_cselect_b32 s46, s46, {WS_Z1}')
    a('s_add_u32 s45, s45, s46')
    a(f'v_mul_u32_u24 v{zaddr}, 1792, v{tl}')
    a(f'v_lshl_add_u32 v{zaddr}, v{hh}, 3, v{zaddr}')
    a('s_and_b32 s46, s41, 3')
    a('s_lshl_b32 s46, s46, 1')
    a('s_lshr_b32 s47, s23, 2')
    a('s_add_u32 s46, s46, s47')
    a('s_lshl_b32 s46, s46, 3')
    a(f's_add_u32 s46, s46, {WS_ST}')
    a(f'v_lshlrev_b32 v{staddr}, 6, v{tl}')
    a(f's_mov_b32 s44, {f2u(GELU_K)}')
    a(f's_mov_b32 s47, {f2u(0.044715)}')
    sm = vE + 40; sq = vE + 41; u0 = vE + 42; u1 = vE + 43
    a(f'v_mov_b32 v{sm}, 0')
    a(f'v_mov_b32 v{sq}, 0')
    for t in range(4):
        lskip = a.newlab('k1zs')
        if t == 3:
            a('s_cmp_ge_u32 s23, 4')
            a(f's_cbranch_scc1 {lskip}')
        acc = vAcc + 16*t
        xs = vE; w = vE + 16
        for j in range(8):
            a(f'v_cvt_pk_bf16_f32 v{u0}, v{acc+2*j}, v{acc+2*j+1}')
            a(f'v_lshlrev_b32 v{xs+2*j}, 16, v{u0}')
            a(f'v_and_b32 v{xs+2*j+1}, 0xffff0000, v{u0}')
        for j in range(16):
            a(f'v_mul_f32 v{w+j}, v{xs+j}, v{xs+j}')
            a(f'v_fma_f32 v{w+j}, v{w+j}, s47, 1.0')
            a(f'v_mul_f32 v{w+j}, v{w+j}, v{xs+j}')
            a(f'v_mul_f32 v{w+j}, s44, v{w+j}')
        for j in range(16):
            a(f'v_exp_f32 v{w+j}, v{w+j}')
        a('s_nop 0')
        for j in range(16):
            a(f'v_add_f32 v{w+j}, 1.0, v{w+j}')
        for j in range(16):
            a(f'v_rcp_f32 v{w+j}, v{w+j}')
        a('s_nop 0')
        for j in range(16):
            a(f'v_mul_f32 v{w+j}, v{w+j}, v{xs+j}')
        for j in range(8):
            a(f'v_cvt_pk_bf16_f32 v{xs+j}, v{w+2*j}, v{w+2*j+1}')
        for q in range(4):
            a(f'buffer_store_dwordx2 {vr(xs+2*q,2)}, v{zaddr}, s[16:19], s45 offen offset:{t*64+q*16}')
        for j in range(8):
            a(f'v_dot2c_f32_bf16 v{sq}, v{xs+j}, v{xs+j}')
            a(f'v_lshlrev_b32 v{u0}, 16, v{xs+j}')
            a(f'v_and_b32 v{u1}, 0xffff0000, v{xs+j}')
            a(f'v_add_f32 v{sm}, v{sm}, v{u0}')
            a(f'v_add_f32 v{sm}, v{sm}, v{u1}')
        if t == 3:
            a.lab(lskip)
    a('s_cmp_lt_u32 s41, 4')
    a(f's_cbranch_scc1 {END}')
    a('s_nop 2')
    xhalf(a, sm, u0, u1, 'v_add_f32', sm)
    xhalf(a, sq, u0, u1, 'v_add_f32', sq)
    a(f'v_mov_b32 v{sm+2}, v{sm}')
    a(f'v_mov_b32 v{sm+3}, v{sq}')
    a('s_mov_b64 exec, 0xffffffff')
    a(f'buffer_store_dwordx2 {vr(sm+2,2)}, v{staddr}, s[16:19], s46 offen')
    a.lab(END)
    a('s_endpgm')
    return name, R.hi, K1_LDS


def gen_k2(a):
    name = 'k2_mix_kernel'
    header(a, name)
    END = 'k2_end'
    KV = 'k2_kv'
    A_RS = 192; B_RS = 144
    A_BUF = 64*A_RS
    B_BUF = 128*B_RS
    L_ST = 0
    L_A = 16384
    L_B = L_A + 2*A_BUF
    LDS = L_B + 2*B_BUF
    a('s_cmp_ge_u32 s2, 240')
    a(f's_cbranch_scc1 {END}')
    a('s_load_dwordx2 s[24:25], s[0:1], 48')
    a('s_load_dwordx2 s[26:27], s[0:1], 56')
    a('s_load_dwordx2 s[32:33], s[0:1], 88')
    a('s_waitcnt lgkmcnt(0)')
    srd(a, 4, 24, 25, S*S*2)
    srd(a, 8, 26, 27, S*2)
    srd(a, 16, 32, 33, WS_SIZE)
    R = Regs(1)
    vLane = R.alloc()
    vT = [R.alloc() for _ in range(10)]
    vAg = R.alloc(); vAl = R.alloc(); vSt = R.alloc()
    vBg = [R.alloc(), R.alloc()]; vBl = [R.alloc(), R.alloc()]
    vAad = R.alloc(); vBad = R.alloc()
    vStg = [R.alloc(12, 4), R.alloc(12, 4)]
    vMR = [R.alloc(2, 2), R.alloc(2, 2)]
    vAcc = R.alloc(64, 4)
    vFr = R.alloc(16, 4)
    vE = R.alloc(40, 4)
    a(f'v_and_b32 v{vLane}, 63, v0')
    a(f'v_lshrrev_b32 v{vT[0]}, 6, v0')
    a('s_nop 0')
    a(f'v_readfirstlane_b32 s23, v{vT[0]}')
    a('s_cmp_ge_u32 s2, 224')
    a(f's_cbranch_scc1 {KV}')
    a('s_and_b32 s20, s2, 7')
    a('s_lshl_b32 s20, s20, 1')
    a('s_lshr_b32 s21, s2, 3')
    a('s_and_b32 s34, s21, 1')
    a('s_add_u32 s20, s20, s34')
    a('s_lshr_b32 s21, s2, 4')
    sl = vT[0]; c = vT[1]
    a(f'v_lshrrev_b32 v{sl}, 3, v0')
    a(f'v_and_b32 v{c}, 7, v0')
    a(f'v_lshlrev_b32 v{c}, 4, v{c}')
    a(f'v_mul_u32_u24 v{vAg}, 1792, v{sl}')
    a(f'v_add_u32 v{vAg}, v{vAg}, v{c}')
    a('s_lshl_b32 s34, s21, 7')
    a(f's_add_u32 s34, s34, {WS_Z2}')
    a(f'v_add_u32 v{vAg}, s34, v{vAg}')
    a(f'v_mul_u32_u24 v{vAl}, {A_RS}, v{sl}')
    a(f'v_add_u32 v{vAl}, v{vAl}, v{c}')
    a(f'v_add_u32 v{vAl}, {L_A}, v{vAl}')
    a(f'v_lshlrev_b32 v{vSt}, 3, v{sl}')
    a('s_lshl_b32 s34, s20, 19')
    for j in range(2):
        a(f'v_add_u32 v{vT[2]}, {64*j}, v{sl}')
        a(f'v_lshlrev_b32 v{vBg[j]}, 12, v{vT[2]}')
        a(f'v_add_u32 v{vBg[j]}, v{vBg[j]}, v{c}')
        a(f'v_add_u32 v{vBg[j]}, s34, v{vBg[j]}')
        a(f'v_mul_u32_u24 v{vBl[j]}, {B_RS}, v{vT[2]}')
        a(f'v_add_u32 v{vBl[j]}, v{vBl[j]}, v{c}')
        a(f'v_add_u32 v{vBl[j]}, {L_B}, v{vBl[j]}')
    def issue(st, sa, sb):
        a(f'buffer_load_dwordx4 {vr(vStg[st],4)}, v{vAg}, s[16:19], {sa} offen')
        for j in range(2):
            a(f'buffer_load_dwordx4 {vr(vStg[st]+4+4*j,4)}, v{vBg[j]}, s[4:7], {sb} offen')
    a('s_mov_b32 s36, 0')
    a('s_mov_b32 s37, 0')
    issue(0, 's36', 's37')
    a(f's_mov_b32 s36, {64*1792}')
    a('s_mov_b32 s37, 128')
    issue(1, 's36', 's37')
    a(f'v_lshlrev_b32 v{vT[2]}, 8, v0')
    a(f's_mov_b32 s38, {WS_ST}')
    sbuf = vAcc
    for tk in range(4):
        for j in range(4):
            a(f'buffer_load_dwordx4 {vr(sbuf+16*tk+4*j,4)}, v{vT[2]}, s[16:19], s38 offen offset:{64*tk+16*j}')
    a('s_waitcnt vmcnt(0)')
    a(f'v_lshlrev_b32 v{vT[3]}, 5, v0')
    inv = f2u(1.0/896.0)
    for tk in range(4):
        b = sbuf + 16*tk
        sm = vE + 2*tk + 1; sq = vE + 2*tk
        a(f'v_add_f32 v{sm}, v{b}, v{b+2}')
        a(f'v_add_f32 v{sq}, v{b+1}, v{b+3}')
        for j in range(2, 8):
            a(f'v_add_f32 v{sm}, v{sm}, v{b+2*j}')
            a(f'v_add_f32 v{sq}, v{sq}, v{b+2*j+1}')
        a(f'v_mul_f32 v{sm}, {inv}, v{sm}')
        a(f'v_mul_f32 v{sq}, {inv}, v{sq}')
        a(f'v_fma_f32 v{sq}, -v{sm}, v{sm}, v{sq}')
        a(f'v_max_f32 v{sq}, 0, v{sq}')
        bf16_round(a, sm, sm)
        bf16_round(a, sq, sq)
        a(f'v_add_f32 v{sq}, {f2u(1e-5)}, v{sq}')
        bf16_round(a, sq, sq)
        a(f'v_sqrt_f32 v{sq}, v{sq}')
        a('s_nop 0')
        bf16_round(a, sq, sq)
        a(f'v_rcp_f32 v{sq}, v{sq}')
        a('s_nop 0')
        a(f'v_mul_f32 v{sm}, v{sm}, v{sq}')
    a(f'ds_write_b128 v{vT[3]}, {vr(vE,4)}')
    a(f'ds_write_b128 v{vT[3]}, {vr(vE+4,4)} offset:16')
    G1 = vT[0]; G2 = vT[1]; rr = vT[2]; cc = vT[3]
    a(f'v_bfe_u32 v{G1}, v{vLane}, 4, 1')
    a(f'v_lshrrev_b32 v{G2}, 5, v{vLane}')
    a(f'v_bfe_u32 v{rr}, v{vLane}, 2, 2')
    a(f'v_and_b32 v{cc}, 3, v{vLane}')
    a(f'v_lshl_add_u32 v{rr}, v{G2}, 3, v{rr}')
    a(f'v_mul_u32_u24 v{vAad}, {A_RS}, v{rr}')
    a(f'v_lshl_add_u32 v{cc}, v{G1}, 2, v{cc}')
    a(f'v_lshl_add_u32 v{vAad}, v{cc}, 3, v{vAad}')
    a('s_lshr_b32 s40, s23, 1')
    a(f's_mul_i32 s41, s40, {16*A_RS}')
    a(f's_add_u32 s41, s41, {L_A}')
    a(f'v_add_u32 v{vAad}, s41, v{vAad}')
    a(f'v_and_b32 v{vT[4]}, 31, v{vLane}')
    a(f'v_mul_u32_u24 v{vBad}, {B_RS}, v{vT[4]}')
    a(f'v_lshl_add_u32 v{vBad}, v{G2}, 4, v{vBad}')
    a('s_and_b32 s41, s23, 1')
    a(f's_mul_i32 s41, s41, {64*B_RS}')
    a('s_lshl_b32 s42, s40, 5')
    a('s_add_u32 s41, s41, s42')
    a(f's_add_u32 s41, s41, {L_B}')
    a(f'v_add_u32 v{vBad}, s41, v{vBad}')
    for i in range(64):
        a(f'v_mov_b32 v{vAcc+i}, 0')
    a('s_waitcnt lgkmcnt(0)')
    a('s_barrier')

    def stage_write(st, buf, mr):
        x = vStg[st]
        t0 = vT[5]; t1 = vT[6]
        for j in range(4):
            a(f'v_lshlrev_b32 v{t0}, 16, v{x+j}')
            a(f'v_and_b32 v{t1}, 0xffff0000, v{x+j}')
            a(f'v_fma_f32 v{t0}, v{t0}, v{mr}, -v{mr+1}')
            a(f'v_fma_f32 v{t1}, v{t1}, v{mr}, -v{mr+1}')
            a(f'v_cvt_pk_bf16_f32 v{x+j}, v{t0}, v{t1}')
        a(f'ds_write_b128 v{vAl}, {vr(x,4)} offset:{buf*A_BUF}')
        for j in range(2):
            a(f'ds_write_b128 v{vBl[j]}, {vr(x+4+4*j,4)} offset:{buf*B_BUF}')

    a(f'ds_read_b64 {vr(vMR[0],2)}, v{vSt}')
    a('s_waitcnt vmcnt(3) lgkmcnt(0)')
    stage_write(0, 0, vMR[0])
    a(f'v_add_u32 v{vSt}, 512, v{vSt}')
    a('s_waitcnt lgkmcnt(0)')
    a('s_barrier')
    a('s_mov_b32 s39, 0')
    LOOP = 'k2_loop'
    a.lab(LOOP)
    for par in range(2):
        a(f's_add_u32 s36, s36, {64*1792}')
        a('s_add_u32 s37, s37, 128')
        issue(par, 's36', 's37')
        a(f'ds_read_b64 {vr(vMR[1-par],2)}, v{vSt}')
        a(f'v_add_u32 v{vSt}, 512, v{vSt}')
        for i in range(2):
            for half in range(2):
                a(f'ds_read_b64_tr_b16 {vr(vFr+4*i+2*half,2)}, v{vAad} offset:{par*A_BUF + 4*half*A_RS + 64*i}')
        for i in range(2):
            a(f'ds_read_b128 {vr(vFr+8+4*i,4)}, v{vBad} offset:{par*B_BUF + 32*i*B_RS}')
        a('s_waitcnt lgkmcnt(0)')
        for i in range(2):
            for jb in range(2):
                t = i*2 + jb
                a(f'v_mfma_f32_32x32x16_bf16 {vr(vAcc+16*t,16)}, {vr(vFr+4*i,4)}, {vr(vFr+8+4*jb,4)}, {vr(vAcc+16*t,16)}')
        a('s_waitcnt vmcnt(3)')
        stage_write(1-par, 1-par, vMR[1-par])
        a('s_waitcnt lgkmcnt(0)')
        a('s_barrier')
    a('s_add_u32 s39, s39, 2')
    a('s_cmp_lt_u32 s39, 32')
    a(f's_cbranch_scc1 {LOOP}')
    a('s_waitcnt vmcnt(0)')
    a.nop(16)
    red = vT[0]
    a(f'v_lshlrev_b32 v{red}, 4, v{vLane}')
    L1 = a.newlab('k2r'); L2 = a.newlab('k2r'); L3 = a.newlab('k2r'); L4 = a.newlab('k2r')
    a('s_and_b32 s41, s23, 3')
    a('s_lshl_b32 s41, s41, 14')
    a(f's_add_u32 s41, s41, {L_A}')
    a(f'v_add_u32 v{red}, s41, v{red}')
    a('s_cmp_lt_u32 s23, 4')
    a(f's_cbranch_scc1 {L1}')
    for i in range(16):
        a(f'ds_write_b128 v{red}, {vr(vAcc+4*i,4)} offset:{1024*i}')
    a('s_waitcnt lgkmcnt(0)')
    a.lab(L1)
    a('s_barrier')
    a('s_cmp_ge_u32 s23, 4')
    a(f's_cbranch_scc1 {L2}')
    for half in range(2):
        for i in range(8):
            a(f'ds_read_b128 {vr(vE+4*i,4)}, v{red} offset:{1024*(8*half+i)}')
        a('s_waitcnt lgkmcnt(0)')
        for i in range(32):
            a(f'v_add_f32 v{vAcc+32*half+i}, v{vAcc+32*half+i}, v{vE+i}')
    a.lab(L2)
    a('s_barrier')
    a('s_cmp_ge_u32 s23, 4')
    a(f's_cbranch_scc1 {END}')
    a(f'v_lshlrev_b32 v{red}, 4, v{vLane}')
    a('s_and_b32 s41, s23, 1')
    a('s_lshl_b32 s41, s41, 14')
    a(f's_add_u32 s41, s41, {L_A}')
    a(f'v_add_u32 v{red}, s41, v{red}')
    a('s_cmp_ge_u32 s23, 2')
    a(f's_cbranch_scc1 {L3}')
    for i in range(8):
        a(f'ds_write_b128 v{red}, {vr(vAcc+32+4*i,4)} offset:{1024*i}')
    a('s_waitcnt lgkmcnt(0)')
    a('s_barrier')
    for i in range(8):
        a(f'ds_read_b128 {vr(vE+4*i,4)}, v{red} offset:{8192+1024*i}')
    a('s_waitcnt lgkmcnt(0)')
    for i in range(32):
        a(f'v_add_f32 v{vAcc+i}, v{vAcc+i}, v{vE+i}')
    a(f's_branch {L4}')
    a.lab(L3)
    for i in range(8):
        a(f'ds_write_b128 v{red}, {vr(vAcc+4*i,4)} offset:{8192+1024*i}')
    a('s_waitcnt lgkmcnt(0)')
    a('s_barrier')
    for i in range(8):
        a(f'ds_read_b128 {vr(vE+4*i,4)}, v{red} offset:{1024*i}')
    a('s_waitcnt lgkmcnt(0)')
    for i in range(32):
        a(f'v_add_f32 v{vAcc+i}, v{vAcc+32+i}, v{vE+i}')
    a.lab(L4)
    tl = vT[1]; hh = vT[2]; za = vT[3]; ba = vT[4]
    a(f'v_and_b32 v{tl}, 31, v{vLane}')
    a(f'v_lshrrev_b32 v{hh}, 5, v{vLane}')
    a('s_lshl_b32 s40, s20, 7')
    a('s_and_b32 s41, s23, 1')
    a('s_lshl_b32 s41, s41, 6')
    a('s_add_u32 s40, s40, s41')
    a(f'v_add_u32 v{tl}, s40, v{tl}')
    a(f'v_lshlrev_b32 v{ba}, 1, v{tl}')
    a(f'v_mul_u32_u24 v{za}, 1792, v{tl}')
    a(f'v_lshl_add_u32 v{za}, v{hh}, 3, v{za}')
    a('s_lshl_b32 s41, s21, 7')
    a('s_lshr_b32 s42, s23, 1')
    a('s_lshl_b32 s42, s42, 6')
    a('s_add_u32 s41, s41, s42')
    a(f's_add_u32 s42, s41, {WS_Z1}')
    a(f's_add_u32 s43, s41, {WS_U}')
    z1 = vE; bb = vE + 16
    for jb in range(2):
        a(f'buffer_load_ushort v{bb+jb}, v{ba}, s[8:11], 0 offen offset:{64*jb}')
        for q in range(4):
            a(f'buffer_load_dwordx2 {vr(z1+8*jb+2*q,2)}, v{za}, s[16:19], s42 offen offset:{jb*32*1792 % 4096 if False else 0 + q*16}' if jb == 0 else
              f'buffer_load_dwordx2 {vr(z1+8*jb+2*q,2)}, v{vT[5]}, s[16:19], s42 offen offset:{q*16}')
        if jb == 0:
            a(f'v_add_u32 v{vT[5]}, {32*1792}, v{za}')
    a('s_waitcnt vmcnt(0)')
    t0 = vT[6]; t1 = vT[7]; t2 = vT[8]
    for jb in range(2):
        a(f'v_lshlrev_b32 v{bb+jb}, 16, v{bb+jb}')
        acc = vAcc + 16*jb
        for j in range(8):
            a(f'v_cvt_pk_bf16_f32 v{t2}, v{acc+2*j}, v{acc+2*j+1}')
            a(f'v_lshlrev_b32 v{t0}, 16, v{t2}')
            a(f'v_and_b32 v{t1}, 0xffff0000, v{t2}')
            a(f'v_add_f32 v{t0}, v{t0}, v{bb+jb}')
            a(f'v_add_f32 v{t1}, v{t1}, v{bb+jb}')
            a(f'v_cvt_pk_bf16_f32 v{t2}, v{t0}, v{t1}')
            a(f'v_lshlrev_b32 v{t0}, 16, v{t2}')
            a(f'v_and_b32 v{t1}, 0xffff0000, v{t2}')
            zz = z1 + 8*jb + j
            a(f'v_lshlrev_b32 v{t2}, 16, v{zz}')
            a(f'v_and_b32 v{zz}, 0xffff0000, v{zz}')
            a(f'v_mul_f32 v{t0}, v{t0}, v{t2}')
            a(f'v_mul_f32 v{t1}, v{t1}, v{zz}')
            a(f'v_cvt_pk_bf16_f32 v{zz}, v{t0}, v{t1}')
        for q in range(4):
            ad = za if jb == 0 else vT[5]
            a(f'buffer_store_dwordx2 {vr(z1+8*jb+2*q,2)}, v{ad}, s[16:19], s43 offen offset:{q*16}')
    a(f's_branch {END}')

    a.lab(KV)
    a('s_sub_u32 s20, s2, 224')
    tl = vT[0]; hh = vT[1]; aad = vT[2]; bad = vT[3]
    a(f'v_and_b32 v{tl}, 31, v{vLane}')
    a(f'v_lshrrev_b32 v{hh}, 5, v{vLane}')
    a(f'v_lshlrev_b32 v{aad}, 12, v{tl}')
    a(f'v_lshl_add_u32 v{aad}, v{hh}, 4, v{aad}')
    a('s_lshl_b32 s40, s23, 9')
    a(f'v_add_u32 v{aad}, s40, v{aad}')
    a('s_lshl_b32 s41, s20, 17')
    a(f's_add_u32 s41, s41, {WS_VT}')
    a('s_lshl_b32 s42, s20, 18')
    a(f's_add_u32 s42, s42, {WS_PHIKT}')
    a(f's_add_u32 s43, s42, {32*4096}')
    a(f'v_cmp_eq_u32 s[44:45], 28, v{tl}')
    a(f'v_cmp_lt_u32 s[46:47], 28, v{tl}')
    for i in range(32):
        a(f'v_mov_b32 v{vAcc+i}, 0')
    one = vT[4]
    a(f'v_mov_b32 v{one}, 0x3f803f80')
    fa = vE; fb0 = vE + 16; fb1 = vE + 32 - 8
    for ch in range(4):
        for ks in range(4):
            off = (ch*4 + ks)*32
            a(f'buffer_load_dwordx4 {vr(vE+4*ks,4)}, v{aad}, s[16:19], s41 offen offset:{off}')
            a(f'buffer_load_dwordx4 {vr(vE+16+4*ks,4)}, v{aad}, s[16:19], s42 offen offset:{off}')
            a(f'buffer_load_dwordx4 {vr(vFr+4*ks,4)}, v{aad}, s[16:19], s43 offen offset:{off}')
        a('s_waitcnt vmcnt(0)')
        for ks in range(4):
            for j in range(4):
                r = vE + 4*ks + j
                a(f'v_cndmask_b32 v{r}, v{r}, v{one}, s[44:45]')
                a(f'v_cndmask_b32 v{r}, v{r}, 0, s[46:47]')
        a('s_nop 1')
        for ks in range(4):
            a(f'v_mfma_f32_32x32x16_bf16 {vr(vAcc,16)}, {vr(vE+4*ks,4)}, {vr(vE+16+4*ks,4)}, {vr(vAcc,16)}')
            a(f'v_mfma_f32_32x32x16_bf16 {vr(vAcc+16,16)}, {vr(vE+4*ks,4)}, {vr(vFr+4*ks,4)}, {vr(vAcc+16,16)}')
        a.nop(8)
    a.nop(16)
    a(f'v_lshlrev_b32 v{bad}, 2, v{tl}')
    a(f'v_lshl_add_u32 v{bad}, v{hh}, 10, v{bad}')
    a('s_lshl_b32 s40, s23, 13')
    a(f'v_add_u32 v{bad}, s40, v{bad}')
    for nt in range(2):
        for q in range(4):
            for i in range(4):
                a(f'ds_write_b32 v{bad}, v{vAcc+16*nt+4*q+i} offset:{(8*q+i)*256 + nt*128}')
    a('s_waitcnt lgkmcnt(0)')
    a('s_barrier')
    a(f'v_lshlrev_b32 v{bad}, 4, v0')
    for w in range(8):
        a(f'ds_read_b128 {vr(vE+4*w,4)}, v{bad} offset:{8192*w}')
    a('s_waitcnt lgkmcnt(0)')
    for w in range(1, 8):
        for j in range(4):
            a(f'v_add_f32 v{vE+j}, v{vE+j}, v{vE+4*w+j}')
    a(f'v_cvt_pk_bf16_f32 v{vE}, v{vE}, v{vE+1}')
    a(f'v_cvt_pk_bf16_f32 v{vE+1}, v{vE+2}, v{vE+3}')
    a(f'v_lshlrev_b32 v{bad}, 3, v0')
    a('s_lshl_b32 s40, s20, 12')
    a(f's_add_u32 s40, s40, {WS_KVT}')
    a(f'buffer_store_dwordx2 {vr(vE,2)}, v{bad}, s[16:19], s40 offen')
    a.lab(END)
    a('s_endpgm')
    return name, R.hi, max(LDS, L_A + 65536)

def gen_k3(a):
    name = 'k3_out_kernel'
    header(a, name)
    END = 'k3_end'
    W_RS = 192; U_RS = 144; O_RS = 912
    W_BUF = 64*W_RS; U_BUF = 64*U_RS
    L_O = 0
    L_W = 64*O_RS
    L_U = L_W + 2*W_BUF
    LDS = L_U + 2*U_BUF
    a('s_cmp_ge_u32 s2, 224')
    a(f's_cbranch_scc1 {END}')
    a('s_load_dwordx2 s[24:25], s[0:1], 0')
    a('s_load_dwordx2 s[26:27], s[0:1], 24')
    a('s_load_dwordx2 s[28:29], s[0:1], 64')
    a('s_load_dwordx2 s[30:31], s[0:1], 72')
    a('s_load_dwordx2 s[32:33], s[0:1], 88')
    a('s_waitcnt lgkmcnt(0)')
    srd(a, 4, 24, 25, S*D*2)
    srd(a, 8, 26, 27, D*D*2)
    srd(a, 12, 28, 29, FH*D*2)
    srd(a, 16, 32, 33, WS_SIZE)
    srd(a, 48, 30, 31, S*D*2)
    R = Regs(1)
    vLane = R.alloc()
    vT = [R.alloc() for _ in range(10)]
    vWg = R.alloc(); vWl = R.alloc(); vUg = R.alloc(); vUl = R.alloc()
    vAad = R.alloc(); vBo = R.alloc(); vBu = R.alloc()
    vStg = [R.alloc(8, 4), R.alloc(8, 4)]
    vAcc = R.alloc(32, 4)
    vFr = R.alloc(12, 4)
    vE = R.alloc(64, 4)
    a(f'v_and_b32 v{vLane}, 63, v0')
    a(f'v_lshrrev_b32 v{vT[0]}, 6, v0')
    a('s_nop 0')
    a(f'v_readfirstlane_b32 s23, v{vT[0]}')
    a('s_and_b32 s20, s2, 7')
    a('s_lshl_b32 s20, s20, 2')
    a('s_lshr_b32 s21, s2, 3')
    a('s_and_b32 s34, s21, 3')
    a('s_add_u32 s20, s20, s34')
    a('s_lshr_b32 s21, s2, 5')
    rw = vT[0]; c = vT[1]
    a(f'v_lshrrev_b32 v{rw}, 3, v0')
    a(f'v_and_b32 v{c}, 7, v0')
    a(f'v_lshlrev_b32 v{c}, 4, v{c}')
    a(f'v_mul_u32_u24 v{vWg}, 896, v{rw}')
    a(f'v_add_u32 v{vWg}, v{vWg}, v{c}')
    a('s_lshl_b32 s34, s21, 7')
    a(f'v_add_u32 v{vWg}, s34, v{vWg}')
    a(f'v_mul_u32_u24 v{vWl}, {W_RS}, v{rw}')
    a(f'v_add_u32 v{vWl}, v{vWl}, v{c}')
    a(f'v_add_u32 v{vWl}, {L_W}, v{vWl}')
    a(f'v_mul_u32_u24 v{vUg}, 1792, v{rw}')
    a(f'v_add_u32 v{vUg}, v{vUg}, v{c}')
    a(f's_mul_i32 s34, s20, {64*1792}')
    a(f's_add_u32 s34, s34, {WS_U}')
    a(f'v_add_u32 v{vUg}, s34, v{vUg}')
    a(f'v_mul_u32_u24 v{vUl}, {U_RS}, v{rw}')
    a(f'v_add_u32 v{vUl}, v{vUl}, v{c}')
    a(f'v_add_u32 v{vUl}, {L_U}, v{vUl}')
    NB = 21
    def issue(blk):
        st = vStg[blk % 2]
        if blk < 7:
            a(f's_mov_b32 s36, {blk*64*896}')
            a(f'buffer_load_dwordx4 {vr(st,4)}, v{vWg}, s[8:11], s36 offen')
        else:
            a(f's_mov_b32 s36, {(blk-7)*64*896}')
            a(f'buffer_load_dwordx4 {vr(st,4)}, v{vWg}, s[12:15], s36 offen')
            a(f'buffer_load_dwordx4 {vr(st+4,4)}, v{vUg}, s[16:19], 0 offen offset:{(blk-7)*128}')
    def nloads(blk):
        return 0 if blk >= NB else (1 if blk < 7 else 2)
    def write(blk):
        st = vStg[blk % 2]
        a(f'ds_write_b128 v{vWl}, {vr(st,4)} offset:{(blk%2)*W_BUF}')
        if blk >= 7:
            a(f'ds_write_b128 v{vUl}, {vr(st+4,4)} offset:{(blk%2)*U_BUF}')
    issue(0)
    issue(1)
    tl = vT[0]; hh = vT[1]; ka = vT[2]; qa = vT[3]; oa = vT[4]
    a(f'v_and_b32 v{tl}, 31, v{vLane}')
    a(f'v_lshrrev_b32 v{hh}, 5, v{vLane}')
    a(f'v_lshlrev_b32 v{ka}, 7, v{tl}')
    a(f'v_lshl_add_u32 v{ka}, v{hh}, 4, v{ka}')
    a('s_lshl_b32 s40, s23, 13')
    a(f's_add_u32 s40, s40, {WS_KVT}')
    a(f'v_lshlrev_b32 v{qa}, 11, v{tl}')
    a(f'v_lshl_add_u32 v{qa}, v{hh}, 4, v{qa}')
    a('s_lshl_b32 s41, s20, 17')
    a('s_lshl_b32 s42, s23, 8')
    a('s_add_u32 s41, s41, s42')
    a(f's_add_u32 s41, s41, {WS_PHIQ}')
    a(f's_add_u32 s42, s41, {32*2048}')
    a(f'v_mul_u32_u24 v{oa}, {O_RS}, v{tl}')
    a(f'v_lshl_add_u32 v{oa}, v{hh}, 3, v{oa}')
    a('s_mul_i32 s43, s23, 112')
    a(f'v_add_u32 v{oa}, s43, v{oa}')
    fA = vE; fB = vE + 16; oacc = vAcc
    d0 = vT[5]; d1 = vT[6]; dn = vT[7]
    for ah in range(2):
        for ks in range(4):
            a(f'buffer_load_dwordx4 {vr(fA+4*ks,4)}, v{ka}, s[16:19], s40 offen offset:{ah*4096 + ks*32}' if ah == 0 else
              f'buffer_load_dwordx4 {vr(fA+4*ks,4)}, v{vT[8]}, s[16:19], s40 offen offset:{ks*32}')
        if ah == 0:
            a(f'v_add_u32 v{vT[8]}, 4096, v{ka}')
        for tt in range(2):
            for ks in range(4):
                a(f'buffer_load_dwordx4 {vr(fB+16*tt+4*ks,4)}, v{qa}, s[16:19], {"s41" if tt==0 else "s42"} offen offset:{ah*128 + ks*32}')
        a('s_waitcnt vmcnt(0)')
        for tt in range(2):
            for ks in range(4):
                cc_ = '0' if ks == 0 else vr(oacc+16*tt, 16)
                a(f'v_mfma_f32_32x32x16_bf16 {vr(oacc+16*tt,16)}, {vr(fA+4*ks,4)}, {vr(fB+16*tt+4*ks,4)}, {cc_}')
        a.nop(16)
        for tt in range(2):
            acc = oacc + 16*tt
            a(f'v_mov_b32 v{d0}, v{acc+12}')
            a(f'v_mov_b32 v{d1}, v{acc+12}')
            a('s_nop 1')
            a(f'v_permlane32_swap_b32 v{d0}, v{d1}')
            a('s_nop 1')
            bf16_round(a, dn, d1)
            a(f'v_add_f32 v{dn}, {f2u(1e-6)}, v{dn}')
            bf16_round(a, dn, dn)
            a(f'v_rcp_f32 v{dn}, v{dn}')
            for j in range(8):
                a(f'v_cvt_pk_bf16_f32 v{d0}, v{acc+2*j}, v{acc+2*j+1}')
                a(f'v_lshlrev_b32 v{acc+2*j}, 16, v{d0}')
                a(f'v_and_b32 v{acc+2*j+1}, 0xffff0000, v{d0}')
            for j in range(16):
                a(f'v_mul_f32 v{acc+j}, v{acc+j}, v{dn}')
            for j in range(8):
                a(f'v_cvt_pk_bf16_f32 v{acc+j}, v{acc+2*j}, v{acc+2*j+1}')
            for q in range(4):
                if q == 3:
                    a('s_mov_b64 exec, 0xffffffff')
                a(f'ds_write_b64 v{oa}, {vr(acc+2*q,2)} offset:{tt*32*O_RS + ah*56 + q*16}')
                if q == 3:
                    a('s_mov_b64 exec, -1')
    G1 = vT[0]; G2 = vT[1]; rr = vT[2]; cc = vT[3]
    a(f'v_bfe_u32 v{G1}, v{vLane}, 4, 1')
    a(f'v_lshrrev_b32 v{G2}, 5, v{vLane}')
    a(f'v_bfe_u32 v{rr}, v{vLane}, 2, 2')
    a(f'v_and_b32 v{cc}, 3, v{vLane}')
    a(f'v_lshl_add_u32 v{rr}, v{G2}, 3, v{rr}')
    a(f'v_mul_u32_u24 v{vAad}, {W_RS}, v{rr}')
    a(f'v_lshl_add_u32 v{cc}, v{G1}, 2, v{cc}')
    a(f'v_lshl_add_u32 v{vAad}, v{cc}, 3, v{vAad}')
    a('s_lshr_b32 s40, s23, 1')
    a(f's_mul_i32 s41, s40, {16*W_RS}')
    a(f's_add_u32 s41, s41, {L_W}')
    a(f'v_add_u32 v{vAad}, s41, v{vAad}')
    a(f'v_and_b32 v{vT[4]}, 31, v{vLane}')
    a('s_and_b32 s41, s23, 1')
    a('s_lshl_b32 s41, s41, 5')
    a(f'v_add_u32 v{vT[4]}, s41, v{vT[4]}')
    a('s_lshl_b32 s42, s40, 5')
    a(f'v_mul_u32_u24 v{vBo}, {O_RS}, v{vT[4]}')
    a(f'v_lshl_add_u32 v{vBo}, v{G2}, 4, v{vBo}')
    a(f'v_add_u32 v{vBo}, s42, v{vBo}')
    a(f'v_mul_u32_u24 v{vBu}, {U_RS}, v{vT[4]}')
    a(f'v_lshl_add_u32 v{vBu}, v{G2}, 4, v{vBu}')
    a(f'v_add_u32 v{vBu}, s42, v{vBu}')
    a(f'v_add_u32 v{vBu}, {L_U}, v{vBu}')
    for i in range(32):
        a(f'v_mov_b32 v{vAcc+i}, 0')
    a(f's_waitcnt vmcnt({nloads(1)})')
    write(0)
    a('s_waitcnt lgkmcnt(0)')
    a('s_barrier')
    for blk in range(NB):
        if blk + 2 < NB:
            issue(blk + 2)
        for i in range(2):
            for half in range(2):
                a(f'ds_read_b64_tr_b16 {vr(vFr+4*i+2*half,2)}, v{vAad} offset:{(blk%2)*W_BUF + 4*half*W_RS + 64*i}')
        if blk < 7:
            a(f'ds_read_b128 {vr(vFr+8,4)}, v{vBo} offset:{blk*128}')
        else:
            a(f'ds_read_b128 {vr(vFr+8,4)}, v{vBu} offset:{(blk%2)*U_BUF}')
        a('s_waitcnt lgkmcnt(0)')
        for i in range(2):
            a(f'v_mfma_f32_32x32x16_bf16 {vr(vAcc+16*i,16)}, {vr(vFr+4*i,4)}, {vr(vFr+8,4)}, {vr(vAcc+16*i,16)}')
        if blk + 1 < NB:
            a(f's_waitcnt vmcnt({nloads(blk+2)})')
            write(blk + 1)
            a('s_waitcnt lgkmcnt(0)')
            a('s_barrier')
    a.nop(16)
    a('s_barrier')
    red = vT[0]
    a(f'v_lshlrev_b32 v{red}, 4, v{vLane}')
    a('s_lshl_b32 s41, s23, 13')
    a(f'v_add_u32 v{red}, s41, v{red}')
    for i in range(8):
        a(f'ds_write_b128 v{red}, {vr(vAcc+4*i,4)} offset:{1024*i}')
    a('s_waitcnt lgkmcnt(0)')
    a('s_barrier')
    a(f'v_lshlrev_b32 v{red}, 4, v{vLane}')
    a('s_and_b32 s41, s23, 1')
    a('s_lshl_b32 s41, s41, 13')
    a('s_lshl_b32 s42, s40, 10')
    a('s_add_u32 s41, s41, s42')
    a(f'v_add_u32 v{red}, s41, v{red}')
    for g in range(4):
        for i in range(2):
            a(f'ds_read_b128 {vr(vE+8*g+4*i,4)}, v{red} offset:{g*16384 + i*4096}')
    tl = vT[1]; hh = vT[2]; xa = vT[3]
    a(f'v_and_b32 v{tl}, 31, v{vLane}')
    a(f'v_lshrrev_b32 v{hh}, 5, v{vLane}')
    a('s_lshl_b32 s41, s20, 6')
    a('s_and_b32 s42, s23, 1')
    a('s_lshl_b32 s42, s42, 5')
    a('s_add_u32 s41, s41, s42')
    a(f'v_add_u32 v{tl}, s41, v{tl}')
    a(f'v_mul_u32_u24 v{xa}, 896, v{tl}')
    a(f'v_lshl_add_u32 v{xa}, v{hh}, 3, v{xa}')
    a('s_lshl_b32 s41, s21, 7')
    a('s_lshl_b32 s42, s40, 4')
    a('s_add_u32 s41, s41, s42')
    xv = vE + 32
    for i in range(2):
        a(f'buffer_load_dwordx2 {vr(xv+2*i,2)}, v{xa}, s[4:7], s41 offen offset:{64*i}')
    a('s_waitcnt lgkmcnt(0)')
    for g in range(1, 4):
        for j in range(8):
            a(f'v_add_f32 v{vE+j}, v{vE+j}, v{vE+8*g+j}')
    a('s_waitcnt vmcnt(0)')
    t0 = vT[5]
    for i in range(2):
        for jj in range(2):
            xx = xv + 2*i + jj
            a(f'v_lshlrev_b32 v{t0}, 16, v{xx}')
            a(f'v_and_b32 v{xx}, 0xffff0000, v{xx}')
            a(f'v_add_f32 v{vE+4*i+2*jj}, v{vE+4*i+2*jj}, v{t0}')
            a(f'v_add_f32 v{vE+4*i+2*jj+1}, v{vE+4*i+2*jj+1}, v{xx}')
            a(f'v_cvt_pk_bf16_f32 v{xx}, v{vE+4*i+2*jj}, v{vE+4*i+2*jj+1}')
        a(f'buffer_store_dwordx2 {vr(xv+2*i,2)}, v{xa}, s[48:51], s41 offen offset:{64*i}')
    a.lab(END)
    a('s_endpgm')
    return name, R.hi, max(LDS, 65536)

def main():
    a = Asm()
    infos = []
    infos.append(gen_k1(a) + (224,))
    infos.append(gen_k2(a) + (240,))
    infos.append(gen_k3(a) + (224,))
    out = []
    for n, nv, lds, g in infos:
        out.append(f'; @launch kernel={n} grid=({g},1,1) block=(512,1,1) lds={lds}')
    out.append('.amdgcn_target "amdgcn-amd-amdhsa--gfx950"')
    out.append('.text')
    out += a.L
    out.append('.section .rodata,"a"')
    for n, nv, lds, g in infos:
        out.append('.p2align 6')
        out.append(descriptor(n, nv))
    open(sys.argv[1] if len(sys.argv) > 1 else 'parallel_sum__linear_kernel_hedgehog__mixer_gmlp__prompt.s', 'w').write('\n'.join(out) + '\n')
    for i in infos: print(i, file=sys.stderr)

main()
```

```python
import sys, struct, os

def f2u(x):
    return struct.unpack('<I', struct.pack('<f', x))[0]

class Asm:
    def __init__(s):
        s.L = []; s.uid = 0
    def __call__(s, t):
        s.L.append('    ' + t)
    def lab(s, l):
        s.L.append(l + ':')
    def newlab(s, p='L'):
        s.uid += 1
        return f'{p}_{s.uid}'
    def nop(s, n):
        while n > 0:
            k = min(n, 16)
            s(f's_nop {k-1}')
            n -= k

class Regs:
    def __init__(s, start=0):
        s.n = start; s.hi = start
    def alloc(s, n=1, align=1):
        s.n = (s.n + align - 1) // align * align
        r = s.n
        s.n += n
        s.hi = max(s.hi, s.n)
        return r

def vr(b, n=1):
    return f'v{b}' if n == 1 else f'v[{b}:{b+n-1}]'

S = 2048; D = 448; H = 16; DH = 28; FH = 896
WS_PHIQ = 0
WS_PHIK = WS_PHIQ + S*H*64*2
WS_V = WS_PHIK + S*H*64*2
WS_Z1 = WS_V + S*D*2 + 4096
WS_Z2 = WS_Z1 + S*FH*2
WS_U = WS_Z2 + S*FH*2
WS_ST = WS_U + S*FH*2
WS_KVT = WS_ST + S*8*2*4
WS_END = WS_KVT + H*32*64*2
WS_SIZE = 268435456

L2E = 1.4426950408889634
GELU_K = -2.0 * 0.7978845608028654 * L2E
OOB = 0x40000000

STAMP = bool(os.environ.get('STAMP'))
WS_STAMP = 200*1024*1024
def stamp(a, i):
    if STAMP:
        a(f's_memtime s[{64+2*i}:{65+2*i}]')
        a('s_waitcnt lgkmcnt(0)')
def stamp_flush(a, n, kidx, tmpv):
    if not STAMP: return
    a('s_mov_b64 exec, 1')
    a('s_lshl_b32 s60, s2, 3')
    a('s_add_u32 s60, s60, s23')
    a('s_lshl_b32 s60, s60, 6')
    a(f's_add_u32 s60, s60, {WS_STAMP + kidx*1024*1024}')
    a(f'v_mov_b32 v{tmpv+1}, 0')
    for i in range(n):
        a(f'v_mov_b32 v{tmpv}, s{64+2*i}')
        a(f'buffer_store_dword v{tmpv}, v{tmpv+1}, s[16:19], s60 offen offset:{4*i}')
        a('s_nop 1')
    a('s_mov_b64 exec, -1')

def srd(a, d, lo, hi, nbytes):
    a(f's_mov_b32 s{d}, s{lo}')
    a(f's_and_b32 s{d+1}, s{hi}, 0xffff')
    a(f's_mov_b32 s{d+2}, {nbytes}')
    a(f's_mov_b32 s{d+3}, 0x00020000')

def bf16_round(a, dst, src):
    a(f'v_cvt_pk_bf16_f32 v{dst}, v{src}, v{src}')
    a(f'v_lshlrev_b32 v{dst}, 16, v{dst}')

def xhalf(a, x, t0, t1, op, dst):
    a(f'v_mov_b32 v{t0}, v{x}')
    a(f'v_mov_b32 v{t1}, v{x}')
    a('s_nop 1')
    a(f'v_permlane32_swap_b32 v{t0}, v{t1}')
    a('s_nop 1')
    a(f'{op} v{dst}, v{t0}, v{t1}')

def ln_finish(a, sm, sq, n):
    inv = f2u(1.0/n)
    a(f'v_mul_f32 v{sm}, {inv}, v{sm}')
    a(f'v_mul_f32 v{sq}, {inv}, v{sq}')
    a(f'v_fma_f32 v{sq}, -v{sm}, v{sm}, v{sq}')
    a(f'v_max_f32 v{sq}, 0, v{sq}')
    bf16_round(a, sm, sm)
    bf16_round(a, sq, sq)
    a(f'v_add_f32 v{sq}, {f2u(1e-5)}, v{sq}')
    bf16_round(a, sq, sq)
    a(f'v_sqrt_f32 v{sq}, v{sq}')
    a('s_nop 0')
    bf16_round(a, sq, sq)
    a(f'v_rcp_f32 v{sq}, v{sq}')
    a('s_nop 0')
    a(f'v_mul_f32 v{sm}, v{sm}, v{sq}')

def header(a, name):
    a.L.append('.p2align 8')
    a.L.append(f'.globl {name}')
    a.L.append(f'.type {name},@function')
    a.lab(name)

def descriptor(name, nv, ns=102):
    nv8 = (nv + 7) // 8 * 8
    return f""".amdhsa_kernel {name}
  .amdhsa_next_free_vgpr {nv8}
  .amdhsa_next_free_sgpr {ns}
  .amdhsa_accum_offset {nv8}
  .amdhsa_group_segment_fixed_size 0
  .amdhsa_kernarg_size 96
  .amdhsa_user_sgpr_count 2
  .amdhsa_user_sgpr_kernarg_segment_ptr 1
  .amdhsa_system_sgpr_workgroup_id_x 1
.end_amdhsa_kernel
"""

def tr_addr(a, dst, vLane, rs, T):
    G1, G2, rr, cc = T[0], T[1], T[2], T[3]
    a(f'v_bfe_u32 v{G1}, v{vLane}, 4, 1')
    a(f'v_lshrrev_b32 v{G2}, 5, v{vLane}')
    a(f'v_bfe_u32 v{rr}, v{vLane}, 2, 2')
    a(f'v_and_b32 v{cc}, 3, v{vLane}')
    a(f'v_lshl_add_u32 v{rr}, v{G2}, 3, v{rr}')
    a(f'v_mul_u32_u24 v{dst}, {rs}, v{rr}')
    a(f'v_lshl_add_u32 v{cc}, v{G1}, 2, v{cc}')
    a(f'v_lshl_add_u32 v{dst}, v{cc}, 3, v{dst}')

K1_WB = 14336
K1_W = 114688
K1_LDS = K1_W + 3*K1_WB

def gen_k1(a):
    name = 'k1_proj_kernel'
    header(a, name)
    END = 'k1_end'
    a('s_cmp_ge_u32 s2, 224')
    a(f's_cbranch_scc1 {END}_x')
    a('s_load_dwordx4 s[24:27], s[0:1], 0')
    a('s_load_dwordx2 s[28:29], s[0:1], 16')
    a('s_load_dwordx2 s[30:31], s[0:1], 40')
    a('s_load_dwordx2 s[32:33], s[0:1], 88')
    stamp(a, 0)
    a('s_and_b32 s20, s2, 7')
    a('s_lshl_b32 s20, s20, 1')
    a('s_lshr_b32 s21, s2, 3')
    a('s_and_b32 s34, s21, 1')
    a('s_add_u32 s20, s20, s34')
    a('s_lshr_b32 s21, s2, 4')
    R = Regs(1)
    vLane = R.alloc()
    vT = [R.alloc() for _ in range(8)]
    vWg = [R.alloc(), R.alloc()]
    vAad = R.alloc(); vBad = [R.alloc() for _ in range(4)]
    vAcc = R.alloc(64, 4)
    vFr = R.alloc(40, 4)
    vPhi = R.alloc(16, 4)
    vE = R.alloc(48, 4)
    vU = R.alloc(48, 4)
    vXg = vFr
    a(f'v_and_b32 v{vLane}, 63, v0')
    a(f'v_lshrrev_b32 v{vT[0]}, 6, v0')
    a(f'v_lshlrev_b32 v{vT[1]}, 4, v0')
    a(f'v_readfirstlane_b32 s23, v{vT[0]}')
    a('s_mul_i32 s34, s23, 896')
    a(f'v_add_u32 v{vT[2]}, s34, v{vLane}')
    for j in range(14):
        pos = vT[3]; row = vT[4]; p = vT[5]; t6 = vT[6]
        a(f'v_add_u32 v{pos}, {64*j}, v{vT[2]}')
        a(f'v_mul_u32_u24 v{row}, 18725, v{pos}')
        a(f'v_lshrrev_b32 v{row}, 20, v{row}')
        a(f'v_lshrrev_b32 v{t6}, 1, v{row}')
        a(f'v_and_b32 v{t6}, 7, v{t6}')
        a(f'v_xor_b32 v{pos}, v{pos}, v{t6}') if False else None
        a(f'v_mul_u32_u24 v{p}, 56, v{row}')
        a(f'v_sub_u32 v{p}, v{pos}, v{p}')
        a(f'v_xor_b32 v{t6}, v{t6}, v{p}')
        a(f'v_and_b32 v{t6}, 7, v{t6}')
        a(f'v_and_b32 v{p}, 0xfffffff8, v{pos}') if False else None
        a(f'v_sub_u32 v{pos}, v{pos}, v{p}')
        a(f'v_and_b32 v{p}, 56, v{p}')
        a(f'v_add3_u32 v{pos}, v{pos}, v{p}, v{t6}')
        a(f'v_lshlrev_b32 v{vXg+j}, 4, v{pos}')
    a('s_mul_i32 s38, s20, 114688')
    a('s_mul_i32 s35, s23, 14336')
    a('s_waitcnt lgkmcnt(0)')
    stamp(a, 4)
    srd(a, 4, 24, 25, S*D*2)
    for j in range(14):
        a(f's_add_u32 m0, s35, {1024*j}')
        a('s_nop 0')
        a(f'buffer_load_dwordx4 v{vXg+j}, s[4:7], s38 offen lds')
    srd(a, 12, 28, 29, H*DH*DH*2)
    srd(a, 16, 32, 33, WS_SIZE)
    a('s_cmp_lt_u32 s21, 6')
    a('s_mov_b32 s22, 2688')
    a('s_cselect_b32 s22, s22, 3584')
    a('s_cselect_b32 s34, s26, s30')
    a('s_cselect_b32 s35, s27, s31')
    a(f's_mov_b32 s36, {D*3*D*2}')
    a(f's_cselect_b32 s36, s36, {D*4*D*2}')
    a('s_cselect_b32 s37, 0, 6')
    a('s_sub_u32 s37, s21, s37')
    a('s_mul_i32 s37, s37, 448')
    a('s_add_u32 s8, s34, s37')
    a('s_addc_u32 s9, s35, 0')
    a('s_and_b32 s9, s9, 0xffff')
    a('s_sub_u32 s10, s36, s37')
    a('s_mov_b32 s11, 0x00020000')
    a('s_lshl_b32 s34, s23, 7')
    a(f'v_add_u32 v{vT[2]}, s34, v{vLane}')
    for j in range(2):
        c = vT[3]; row = vT[4]; col = vT[5]
        a(f'v_add_u32 v{c}, {64*j}, v{vT[2]}')
        a(f'v_mul_u32_u24 v{row}, 2341, v{c}')
        a(f'v_lshrrev_b32 v{row}, 16, v{row}')
        a(f'v_mul_u32_u24 v{col}, 28, v{row}')
        a(f'v_sub_u32 v{col}, v{c}, v{col}')
        a(f'v_lshlrev_b32 v{col}, 4, v{col}')
        a(f'v_mul_lo_u32 v{vWg[j]}, v{row}, s22')
        a(f'v_add_u32 v{vWg[j]}, v{vWg[j]}, v{col}')
    a('s_lshl_b32 s48, s23, 11')
    a(f's_add_u32 s48, s48, {K1_W}')
    def w_dma(blk):
        lab = a.newlab('k1w')
        a('s_cmp_eq_u32 s23, 7')
        a(f's_cbranch_scc1 {lab}')
        a(f's_mul_i32 s38, s22, {32*blk}')
        for j in range(2):
            a(f's_add_u32 m0, s48, {(blk%3)*K1_WB + j*1024}')
            a('s_nop 0')
            a(f'buffer_load_dwordx4 v{vWg[j]}, s[8:11], s38 offen lds')
        a.lab(lab)
    w_dma(0)
    w_dma(1)
    a('s_and_b32 s39, s21, 1')
    a('s_mul_i32 s40, s39, 12544')
    vPl = vE
    a(f'v_add_u32 v{vT[2]}, 8192, v{vT[1]}')
    a(f'buffer_load_dwordx4 {vr(vPl,4)}, v{vT[1]}, s[12:15], s40 offen')
    a(f'v_mov_b32 v{vT[3]}, {OOB}')
    a('v_cmp_gt_u32 vcc, 272, v0')
    a('s_nop 1')
    a(f'v_cndmask_b32 v{vT[2]}, v{vT[3]}, v{vT[2]}, vcc')
    a(f'buffer_load_dwordx4 {vr(vPl+4,4)}, v{vT[2]}, s[12:15], s40 offen')
    tr_addr(a, vAad, vLane, 448, vT[2:6])
    a(f'v_add_u32 v{vAad}, {K1_W}, v{vAad}')
    a(f'v_and_b32 v{vT[2]}, 31, v{vLane}')
    a(f'v_lshrrev_b32 v{vT[3]}, 5, v{vLane}')
    a(f'v_bfe_u32 v{vT[4]}, v{vT[2]}, 1, 3')
    for m in range(4):
        a(f'v_add_u32 v{vT[5]}, {2*m}, v{vT[3]}')
        a(f'v_xor_b32 v{vT[5]}, v{vT[5]}, v{vT[4]}')
        a(f'v_mul_u32_u24 v{vBad[m]}, 896, v{vT[2]}')
        a(f'v_lshl_add_u32 v{vBad[m]}, v{vT[5]}, 4, v{vBad[m]}')
    stamp(a, 5)
    a('s_waitcnt vmcnt(0)')
    stamp(a, 6)
    a(f'v_add_u32 v{vT[2]}, {K1_W + 2*K1_WB}, v{vT[1]}')
    a(f'ds_write_b128 v{vT[2]}, {vr(vPl,4)}')
    a('v_cmp_gt_u32 vcc, 320, v0')
    a('s_and_saveexec_b64 s[50:51], vcc')
    a(f'ds_write_b128 v{vT[2]}, {vr(vPl+4,4)} offset:8192')
    a('s_mov_b64 exec, -1')
    a('s_waitcnt lgkmcnt(0)')
    a('s_barrier')
    stamp(a, 7)
    vX = vAcc
    row = vT[2]; qd = vT[3]; lo = vT[4]
    a(f'v_lshrrev_b32 v{row}, 2, v0')
    a(f'v_and_b32 v{qd}, 3, v0')
    a(f'v_mul_u32_u24 v{lo}, 896, v{row}')
    a(f'v_mul_u32_u24 v{qd}, 224, v{qd}')
    a(f'v_add_u32 v{lo}, v{lo}, v{qd}')
    for j in range(14):
        a(f'ds_read_b128 {vr(vX+4*j,4)}, v{lo} offset:{16*j}')
    G1, G2, rr, cc = vE+16, vE+17, vE+18, vE+19
    pa = vE + 20
    a(f'v_bfe_u32 v{G1}, v{vLane}, 4, 1')
    a(f'v_lshrrev_b32 v{G2}, 5, v{vLane}')
    a(f'v_bfe_u32 v{rr}, v{vLane}, 2, 2')
    a(f'v_and_b32 v{cc}, 3, v{vLane}')
    a(f'v_lshl_add_u32 v{rr}, v{G2}, 2, v{rr}')
    a(f'v_mul_u32_u24 v{pa}, 56, v{rr}')
    a(f'v_lshl_add_u32 v{cc}, v{G1}, 2, v{cc}')
    a(f'v_lshl_add_u32 v{pa}, v{cc}, 3, v{pa}')
    a('s_lshr_b32 s40, s23, 1')
    a('s_mul_i32 s40, s40, 3136')
    a(f's_add_u32 s40, s40, {K1_W + 2*K1_WB}')
    a(f'v_add_u32 v{pa}, s40, v{pa}')
    for ah in range(2):
        for ks in range(2):
            for half in range(2):
                a(f'ds_read_b64_tr_b16 {vr(vPhi+ah*8+ks*4+2*half,2)}, v{pa} offset:{ah*1568 + (16*ks+8*half)*56}')
    def U(i):
        return (vFr + i) if i < 40 else ((vE + 24 + i - 40) if i < 64 else (vU + i - 64))
    sm2 = vE+8; sq2 = vE+10; t0 = vE+12; t1 = vE+13; sm = vE+14; sq = vE+15
    for j in range(56):
        if j % 4 == 0:
            a(f's_waitcnt lgkmcnt({min(15, 8 + 13 - j//4)})')
        a(f'v_lshlrev_b32 v{U(2*j)}, 16, v{vX+j}')
        a(f'v_and_b32 v{U(2*j+1)}, 0xffff0000, v{vX+j}')
        if j == 0:
            a(f'v_pk_mul_f32 {vr(sq2,2)}, {vr(U(0),2)}, {vr(U(0),2)}')
            a(f'v_mov_b32 v{sm2}, v{U(0)}')
            a(f'v_mov_b32 v{sm2+1}, v{U(1)}')
        else:
            a(f'v_pk_fma_f32 {vr(sq2,2)}, {vr(U(2*j),2)}, {vr(U(2*j),2)}, {vr(sq2,2)}')
            a(f'v_pk_add_f32 {vr(sm2,2)}, {vr(sm2,2)}, {vr(U(2*j),2)}')
    a(f'v_add_f32 v{sm}, v{sm2}, v{sm2+1}')
    a(f'v_add_f32 v{sq}, v{sq2}, v{sq2+1}')
    a('s_nop 1')
    for perm in ('[1,0,3,2]', '[2,3,0,1]'):
        a(f'v_add_f32_dpp v{t0}, v{sm}, v{sm} quad_perm:{perm} row_mask:0xf bank_mask:0xf')
        a(f'v_add_f32_dpp v{t1}, v{sq}, v{sq} quad_perm:{perm} row_mask:0xf bank_mask:0xf')
        a(f'v_mov_b32 v{sm}, v{t0}')
        a(f'v_mov_b32 v{sq}, v{t1}')
        a('s_nop 1')
    ln_finish(a, sm, sq, 448.0)
    rr2 = vE+8; nm2 = vE+10
    a(f'v_mov_b32 v{rr2}, v{sq}')
    a(f'v_mov_b32 v{rr2+1}, v{sq}')
    a(f'v_sub_f32 v{nm2}, 0, v{sm}')
    a(f'v_sub_f32 v{nm2+1}, 0, v{sm}')
    for j in range(56):
        a(f'v_pk_fma_f32 {vr(U(2*j),2)}, {vr(U(2*j),2)}, {vr(rr2,2)}, {vr(nm2,2)}')
        a(f'v_cvt_pk_bf16_f32 v{vX+j}, v{U(2*j)}, v{U(2*j+1)}')
        if j % 4 == 3:
            a(f'ds_write_b128 v{lo}, {vr(vX+j-3,4)} offset:{4*(j-3)}')
    for i in range(64):
        a(f'v_mov_b32 v{vAcc+i}, 0')
    a('s_waitcnt lgkmcnt(0)')
    a('s_barrier')
    stamp(a, 1)

    LZ = 'k1_zpath'
    a('s_cmp_ge_u32 s21, 6')
    a(f's_cbranch_scc1 {LZ}')

    def mainloop(kind):
        if kind == 'h':
            a('s_lshr_b32 s40, s23, 1')
            a('s_mul_i32 s40, s40, 112')
            a('s_and_b32 s41, s23, 1')
            a(f's_mul_i32 s41, s41, {64*896}')
            nA, nB = 2, 2
            aoff = [0, 56]; boff = [0, 32*896]
        else:
            a('s_lshr_b32 s40, s23, 2')
            a('s_mul_i32 s40, s40, 256')
            a('s_and_b32 s41, s23, 3')
            a(f's_mul_i32 s41, s41, {32*896}')
            nA, nB = 4, 1
            aoff = [0, 64, 128, 192]; boff = [0]
        va = vT[5]
        a(f'v_add_u32 v{va}, s40, v{vAad}')
        for m in range(4):
            a(f'v_add_u32 v{vBad[m]}, s41, v{vBad[m]}')
        NBLK = 14
        for blk in range(NBLK):
            if blk + 2 < NBLK:
                w_dma(blk + 2)
            for ks in range(2):
                fb = vFr + ks*20
                for i in range(nA):
                    for half in range(2):
                        off = (blk % 3)*K1_WB + (16*ks + 4*half)*448 + aoff[i]
                        a(f'ds_read_b64_tr_b16 {vr(fb+4*i+2*half,2)}, v{va} offset:{off}')
                for i in range(nB):
                    off = boff[i] + (blk >> 1)*128
                    a(f'ds_read_b128 {vr(fb+4*(nA+i),4)}, v{vBad[2*(blk&1)+ks]} offset:{off}')
            nrd = 2*nA + nB
            for ks in range(2):
                a(f's_waitcnt lgkmcnt({nrd if ks == 0 else 0})')
                fb = vFr + ks*20
                for i in range(nA):
                    for jb in range(nB):
                        t = i*nB + jb
                        a(f'v_mfma_f32_32x32x16_bf16 {vr(vAcc+16*t,16)}, {vr(fb+4*i,4)}, {vr(fb+4*(nA+jb),4)}, {vr(vAcc+16*t,16)}')
            if blk + 1 < NBLK:
                a(f's_waitcnt vmcnt({2 if blk + 2 < NBLK else 0})')
                a('s_barrier')
        stamp(a, 2)
        a.nop(8)
        a('s_barrier')

    ERS = 272
    mainloop('h')
    a('s_and_b32 s39, s21, 1')
    a('s_lshl_b32 s39, s39, 3')
    a('s_lshr_b32 s40, s23, 1')
    a('s_lshl_b32 s40, s40, 1')
    a('s_add_u32 s39, s39, s40')
    a('s_mov_b32 s42, 0')
    a('s_mov_b32 s43, -1')
    tl = vT[0]; hh = vT[1]; wa = vT[2]; ra = vT[3]; ga = vT[4]
    a(f'v_and_b32 v{tl}, 31, v{vLane}')
    a(f'v_lshrrev_b32 v{hh}, 5, v{vLane}')
    a(f's_mul_i32 s45, s23, {64*ERS}')
    a(f'v_mul_u32_u24 v{wa}, {ERS}, v{tl}')
    a(f'v_lshl_add_u32 v{wa}, v{hh}, 3, v{wa}')
    a(f'v_add_u32 v{wa}, s45, v{wa}')
    a('s_lshl_b32 s40, s20, 7')
    a('s_and_b32 s41, s23, 1')
    a('s_lshl_b32 s41, s41, 6')
    a('s_add_u32 s40, s40, s41')
    LV = 'k1_vpath'
    a('s_cmp_ge_u32 s21, 4')
    a(f's_cbranch_scc1 {LV}')
    P = vE; p = vE + 8
    mx = vE + 24; mn = vE + 25; u0 = vE + 26; u1 = vE + 27; sp = vE + 28; sn = vE + 29
    en = vFr; ep = vFr + 16; T2 = vE + 32
    mx2 = vU; mn2 = vU + 2; sp2 = vU + 4; sn2 = vU + 6
    a(f's_mov_b32 s44, {f2u(L2E)}')
    a(f's_mov_b32 s45, {f2u(L2E)}')
    a(f's_mov_b32 s46, {f2u(-L2E)}')
    a(f's_mov_b32 s47, {f2u(-L2E)}')
    a(f's_mul_i32 s53, s23, {64*ERS}')
    for ah in range(2):
        for b in range(2):
            acc = vAcc + 16*(ah*2+b)
            for j in range(8):
                a(f'v_cvt_pk_bf16_f32 v{P+j}, v{acc+2*j}, v{acc+2*j+1}')
            a(f'v_cndmask_b32 v{P+6}, v{P+6}, 0, s[42:43]')
            a(f'v_cndmask_b32 v{P+7}, v{P+7}, 0, s[42:43]')
            a('s_nop 1')
            a(f'v_mfma_f32_32x32x16_bf16 {vr(T2,16)}, {vr(vPhi+ah*8,4)}, {vr(P,4)}, 0')
            a(f'v_mfma_f32_32x32x16_bf16 {vr(T2,16)}, {vr(vPhi+ah*8+4,4)}, {vr(P+4,4)}, {vr(T2,16)}')
            a.nop(12)
            for j in range(8):
                a(f'v_cvt_pk_bf16_f32 v{u0}, v{T2+2*j}, v{T2+2*j+1}')
                a(f'v_lshlrev_b32 v{p+2*j}, 16, v{u0}')
                a(f'v_and_b32 v{p+2*j+1}, 0xffff0000, v{u0}')
            for j in range(12, 16):
                a(f'v_cndmask_b32 v{p+j}, v{p+j}, v{p+11}, s[42:43]')
            a(f'v_max3_f32 v{mx}, v{p}, v{p+1}, v{p+2}')
            a(f'v_min3_f32 v{mn}, v{p}, v{p+1}, v{p+2}')
            for j in range(3, 15, 2):
                a(f'v_max3_f32 v{mx}, v{mx}, v{p+j}, v{p+j+1}')
                a(f'v_min3_f32 v{mn}, v{mn}, v{p+j}, v{p+j+1}')
            a(f'v_max_f32 v{mx}, v{mx}, v{p+15}')
            a(f'v_min_f32 v{mn}, v{mn}, v{p+15}')
            xhalf(a, mx, u0, u1, 'v_max_f32', mx)
            xhalf(a, mn, u0, u1, 'v_min_f32', mn)
            a(f'v_mul_f32 v{mx2}, s44, v{mx}')
            a(f'v_mul_f32 v{mn2}, s44, v{mn}')
            a(f'v_sub_f32 v{mx2}, 0, v{mx2}')
            for j in range(0, 16, 2):
                a(f'v_pk_fma_f32 {vr(ep+j,2)}, {vr(p+j,2)}, s[44:45], {vr(mx2,2)} op_sel_hi:[1,1,0]')
                a(f'v_pk_fma_f32 {vr(en+j,2)}, {vr(p+j,2)}, s[46:47], {vr(mn2,2)} op_sel_hi:[1,1,0]')
            for j in range(16):
                a(f'v_exp_f32 v{ep+j}, v{ep+j}')
                a(f'v_exp_f32 v{en+j}, v{en+j}')
            a('s_nop 0')
            for j in range(12, 16):
                a(f'v_cndmask_b32 v{ep+j}, v{ep+j}, 0, s[42:43]')
                a(f'v_cndmask_b32 v{en+j}, v{en+j}, 0, s[42:43]')
            a(f'v_pk_add_f32 {vr(sp2,2)}, {vr(ep,2)}, {vr(ep+2,2)}')
            a(f'v_pk_add_f32 {vr(sn2,2)}, {vr(en,2)}, {vr(en+2,2)}')
            for j in range(4, 16, 2):
                a(f'v_pk_add_f32 {vr(sp2,2)}, {vr(sp2,2)}, {vr(ep+j,2)}')
                a(f'v_pk_add_f32 {vr(sn2,2)}, {vr(sn2,2)}, {vr(en+j,2)}')
            a(f'v_add_f32 v{sp}, v{sp2}, v{sp2+1}')
            a(f'v_add_f32 v{sn}, v{sn2}, v{sn2+1}')
            xhalf(a, sp, u0, u1, 'v_add_f32', sp)
            xhalf(a, sn, u0, u1, 'v_add_f32', sn)
            a(f'v_rcp_f32 v{sp2}, v{sp}')
            a(f'v_rcp_f32 v{sn2}, v{sn}')
            a('s_nop 0')
            for j in range(0, 16, 2):
                a(f'v_pk_mul_f32 {vr(ep+j,2)}, {vr(ep+j,2)}, {vr(sp2,2)} op_sel_hi:[1,0]')
                a(f'v_pk_mul_f32 {vr(en+j,2)}, {vr(en+j,2)}, {vr(sn2,2)} op_sel_hi:[1,0]')
            for j in range(8):
                a(f'v_cvt_pk_bf16_f32 v{ep+j}, v{ep+2*j}, v{ep+2*j+1}')
                a(f'v_cvt_pk_bf16_f32 v{en+j}, v{en+2*j}, v{en+2*j+1}')
            for q in range(4):
                for neg, src in ((0, ep), (1, en)):
                    a(f'ds_write_b64 v{wa}, {vr(src+2*q,2)} offset:{b*32*ERS + ah*128 + q*16 + neg*64}')
    LKS = 'k1_kst'
    a('s_cmp_ge_u32 s21, 2')
    a(f's_cbranch_scc1 {LKS}')
    a(f'v_mul_u32_u24 v{ra}, {ERS}, v{tl}')
    a(f'v_lshl_add_u32 v{ra}, v{hh}, 4, v{ra}')
    a(f'v_add_u32 v{ra}, s53, v{ra}')
    a(f'v_lshlrev_b32 v{ga}, 4, v{vLane}')
    a('s_lshl_b32 s46, s40, 11')
    a('s_lshl_b32 s47, s39, 12')
    a('s_add_u32 s46, s46, s47')
    a('s_waitcnt lgkmcnt(0)')
    idx = [(tt, ah, ks) for tt in range(2) for ah in range(2) for ks in range(4)]
    for i, (tt, ah, ks) in enumerate(idx):
        a(f'ds_read_b128 {vr(vAcc+4*i,4)}, v{ra} offset:{tt*32*ERS + ah*128 + ks*32}')
    for i, (tt, ah, ks) in enumerate(idx):
        a(f's_waitcnt lgkmcnt({15-i})')
        a(f's_add_u32 s47, s46, {WS_PHIQ + tt*65536 + ah*4096 + ks*1024}')
        a(f'buffer_store_dwordx4 {vr(vAcc+4*i,4)}, v{ga}, s[16:19], s47 offen')
    a(f's_branch {END}')
    a.lab(LKS)
    a(f'v_lshrrev_b32 v{vT[5]}, 4, v{vLane}')
    a(f'v_and_b32 v{vT[6]}, 15, v{vLane}')
    a(f'v_mul_u32_u24 v{ra}, {ERS}, v{vT[5]}')
    a(f'v_lshl_add_u32 v{ra}, v{vT[6]}, 4, v{ra}')
    a(f'v_add_u32 v{ra}, s53, v{ra}')
    a(f'v_lshlrev_b32 v{ga}, 11, v{vT[5]}')
    a(f'v_lshl_add_u32 v{ga}, v{vT[6]}, 4, v{ga}')
    a('s_lshl_b32 s46, s40, 11')
    a('s_lshl_b32 s47, s39, 7')
    a('s_add_u32 s46, s46, s47')
    a(f's_add_u32 s46, s46, {WS_PHIK}')
    a('s_waitcnt lgkmcnt(0)')
    for i in range(16):
        a(f'ds_read_b128 {vr(vAcc+4*i,4)}, v{ra} offset:{4*i*ERS}')
    for i in range(16):
        a(f's_waitcnt lgkmcnt({15-i})')
        a(f'buffer_store_dwordx4 {vr(vAcc+4*i,4)}, v{ga}, s[16:19], s46 offen')
        a('s_add_u32 s46, s46, 8192')
    a(f's_branch {END}')
    a.lab(LV)
    for ah in range(2):
        for b in range(2):
            acc = vAcc + 16*(ah*2+b)
            for j in range(8):
                a(f'v_cvt_pk_bf16_f32 v{vE+j}, v{acc+2*j}, v{acc+2*j+1}')
            for q in range(4):
                if q == 3:
                    a('s_mov_b64 exec, 0xffffffff')
                a(f'ds_write_b64 v{wa}, {vr(vE+2*q,2)} offset:{b*32*ERS + ah*56 + q*16}')
                if q == 3:
                    a('s_mov_b64 exec, -1')
    a(f'v_lshrrev_b32 v{vT[5]}, 3, v{vLane}')
    a(f'v_and_b32 v{vT[6]}, 7, v{vLane}')
    a(f'v_mul_u32_u24 v{ra}, {ERS}, v{vT[5]}')
    a(f'v_lshl_add_u32 v{ra}, v{vT[6]}, 4, v{ra}')
    a(f'v_add_u32 v{ra}, s45, v{ra}')
    a(f'v_mul_u32_u24 v{ga}, 896, v{vT[5]}')
    a(f'v_lshl_add_u32 v{ga}, v{vT[6]}, 4, v{ga}')
    a('s_mul_i32 s46, s40, 896')
    a('s_mul_i32 s47, s39, 56')
    a('s_add_u32 s46, s46, s47')
    a(f's_add_u32 s46, s46, {WS_V}')
    a(f'v_cmp_gt_u32 vcc, 7, v{vT[6]}')
    a('s_waitcnt lgkmcnt(0)')
    for i in range(8):
        a(f'ds_read_b128 {vr(vAcc+4*i,4)}, v{ra} offset:{8*i*ERS}')
    a('s_and_saveexec_b64 s[50:51], vcc')
    for i in range(8):
        a(f's_waitcnt lgkmcnt({7-i})')
        a(f'buffer_store_dwordx4 {vr(vAcc+4*i,4)}, v{ga}, s[16:19], s46 offen')
        a(f's_add_u32 s46, s46, {8*896}')
    a(f's_branch {END}')

    a.lab(LZ)
    mainloop('z')
    tl = vT[0]; hh = vT[1]; wa = vT[2]; ra = vT[3]; ga = vT[4]; staddr = vT[7]
    a(f'v_and_b32 v{tl}, 31, v{vLane}')
    a(f'v_lshrrev_b32 v{hh}, 5, v{vLane}')
    a(f's_mul_i32 s49, s23, {32*ERS}')
    a(f'v_mul_u32_u24 v{wa}, {ERS}, v{tl}')
    a(f'v_lshl_add_u32 v{wa}, v{hh}, 3, v{wa}')
    a(f'v_add_u32 v{wa}, s49, v{wa}')
    a('s_lshl_b32 s40, s20, 7')
    a('s_and_b32 s41, s23, 3')
    a('s_lshl_b32 s41, s41, 5')
    a('s_add_u32 s40, s40, s41')
    a(f'v_add_u32 v{tl}, s40, v{tl}')
    a('s_sub_u32 s41, s21, 6')
    a('s_and_b32 s45, s41, 3')
    a('s_mul_i32 s45, s45, 448')
    a('s_lshr_b32 s46, s23, 2')
    a('s_lshl_b32 s46, s46, 8')
    a('s_add_u32 s45, s45, s46')
    a('s_cmp_ge_u32 s41, 4')
    a(f's_mov_b32 s46, {WS_Z2}')
    a(f's_cselect_b32 s46, s46, {WS_Z1}')
    a('s_add_u32 s45, s45, s46')
    a('s_mul_i32 s46, s40, 1792')
    a('s_add_u32 s45, s45, s46')
    a('s_and_b32 s46, s41, 3')
    a('s_lshl_b32 s46, s46, 1')
    a('s_lshr_b32 s47, s23, 2')
    a('s_add_u32 s46, s46, s47')
    a('s_lshl_b32 s46, s46, 14')
    a(f's_add_u32 s46, s46, {WS_ST}')
    a(f'v_lshlrev_b32 v{staddr}, 2, v{tl}')
    a(f's_mov_b32 s44, {f2u(GELU_K)}')
    a(f's_mov_b32 s47, {f2u(0.044715)}')
    sm = vE + 40; sq = vE + 41; u0 = vE + 42; u1 = vE + 43
    gk = vU
    a(f'v_mov_b32 v{gk}, {f2u(GELU_K*0.044715)}')
    a(f'v_mov_b32 v{gk+1}, {f2u(GELU_K*0.044715)}')
    a(f'v_mov_b32 v{gk+2}, {f2u(GELU_K)}')
    a(f'v_mov_b32 v{gk+3}, {f2u(GELU_K)}')
    a(f'v_mov_b32 v{gk+4}, 1.0')
    a(f'v_mov_b32 v{gk+5}, 1.0')
    a(f'v_mov_b32 v{sm}, 0')
    a(f'v_mov_b32 v{sq}, 0')
    for t in range(4):
        lskip = a.newlab('k1zs')
        if t == 3:
            a('s_cmp_ge_u32 s23, 4')
            a(f's_cbranch_scc1 {lskip}')
        acc = vAcc + 16*t
        xs = vE; w = vE + 16
        for j in range(8):
            a(f'v_cvt_pk_bf16_f32 v{u0}, v{acc+2*j}, v{acc+2*j+1}')
            a(f'v_lshlrev_b32 v{xs+2*j}, 16, v{u0}')
            a(f'v_and_b32 v{xs+2*j+1}, 0xffff0000, v{u0}')
        for j in range(0, 16, 2):
            a(f'v_pk_mul_f32 {vr(w+j,2)}, {vr(xs+j,2)}, {vr(xs+j,2)}')
            a(f'v_pk_fma_f32 {vr(w+j,2)}, {vr(w+j,2)}, {vr(gk,2)}, {vr(gk+2,2)}')
            a(f'v_pk_mul_f32 {vr(w+j,2)}, {vr(w+j,2)}, {vr(xs+j,2)}')
        for j in range(16):
            a(f'v_exp_f32 v{w+j}, v{w+j}')
        a('s_nop 0')
        for j in range(0, 16, 2):
            a(f'v_pk_add_f32 {vr(w+j,2)}, {vr(w+j,2)}, {vr(gk+4,2)}')
        for j in range(16):
            a(f'v_rcp_f32 v{w+j}, v{w+j}')
        a('s_nop 0')
        for j in range(0, 16, 2):
            a(f'v_pk_mul_f32 {vr(w+j,2)}, {vr(w+j,2)}, {vr(xs+j,2)}')
        for j in range(8):
            a(f'v_cvt_pk_bf16_f32 v{xs+j}, v{w+2*j}, v{w+2*j+1}')
        for q in range(4):
            a(f'ds_write_b64 v{wa}, {vr(xs+2*q,2)} offset:{t*64+q*16}')
        for j in range(8):
            a(f'v_dot2c_f32_bf16 v{sq}, v{xs+j}, v{xs+j}')
            a(f'v_lshlrev_b32 v{u0}, 16, v{xs+j}')
            a(f'v_and_b32 v{u1}, 0xffff0000, v{xs+j}')
            a(f'v_add_f32 v{sm}, v{sm}, v{u0}')
            a(f'v_add_f32 v{sm}, v{sm}, v{u1}')
        if t == 3:
            a.lab(lskip)
    a(f'v_lshrrev_b32 v{vT[5]}, 4, v{vLane}')
    a(f'v_and_b32 v{vT[6]}, 15, v{vLane}')
    a(f'v_mul_u32_u24 v{ra}, {ERS}, v{vT[5]}')
    a(f'v_lshl_add_u32 v{ra}, v{vT[6]}, 4, v{ra}')
    a(f'v_add_u32 v{ra}, s49, v{ra}')
    a(f'v_mul_u32_u24 v{ga}, 1792, v{vT[5]}')
    a(f'v_lshl_add_u32 v{ga}, v{vT[6]}, 4, v{ga}')
    a('s_cmp_ge_u32 s23, 4')
    a('s_cselect_b32 s52, 12, 16')
    a(f'v_cmp_gt_u32 vcc, s52, v{vT[6]}')
    a('s_waitcnt lgkmcnt(0)')
    for i in range(8):
        a(f'ds_read_b128 {vr(vAcc+4*i,4)}, v{ra} offset:{4*i*ERS}')
    a('s_and_saveexec_b64 s[50:51], vcc')
    for i in range(8):
        a(f's_waitcnt lgkmcnt({7-i})')
        a(f'buffer_store_dwordx4 {vr(vAcc+4*i,4)}, v{ga}, s[16:19], s45 offen')
        a(f's_add_u32 s45, s45, {4*1792}')
    a('s_mov_b64 exec, -1')
    a('s_cmp_lt_u32 s41, 4')
    a(f's_cbranch_scc1 {END}')
    xhalf(a, sm, u0, u1, 'v_add_f32', sm)
    xhalf(a, sq, u0, u1, 'v_add_f32', sq)
    a('s_mov_b64 exec, 0xffffffff')
    a(f'buffer_store_dword v{sm}, v{staddr}, s[16:19], s46 offen')
    a(f's_add_u32 s46, s46, 8192')
    a(f'buffer_store_dword v{sq}, v{staddr}, s[16:19], s46 offen')
    a.lab(END)
    a('s_mov_b64 exec, -1')
    stamp(a, 3)
    stamp_flush(a, 8, 0, vE)
    a.lab(END + '_x')
    a('s_endpgm')
    return name, R.hi, K1_LDS

def gen_k2(a):
    name = 'k2_mix_kernel'
    header(a, name)
    END = 'k2_end'; KV = 'k2_kv'
    A_RS = 192
    A_BUF = 64*A_RS; B_BUF = 16384
    L_A = 16384
    L_B = L_A + 3*A_BUF
    SLAB = 128*272
    LDS = max(L_B + 4*B_BUF, 4*SLAB, 8*16384)
    NBLK = 32
    a('s_cmp_ge_u32 s2, 240')
    a(f's_cbranch_scc1 {END}_x')
    a('s_load_dwordx4 s[24:27], s[0:1], 48')
    a('s_load_dwordx2 s[32:33], s[0:1], 88')
    stamp(a, 0); stamp(a, 1); stamp(a, 2)
    R = Regs(1)
    vLane = R.alloc()
    vT = [R.alloc() for _ in range(10)]
    vAg = R.alloc(); vAl = R.alloc(); vSt = R.alloc()
    vBg = [R.alloc(), R.alloc()]
    vAad = R.alloc(); vBad = R.alloc()
    vStg = [R.alloc(4, 4) for _ in range(4)]
    vMR = [R.alloc(2, 2) for _ in range(2)]
    vAcc = R.alloc(64, 4)
    vFr = [R.alloc(16, 4), R.alloc(16, 4)]
    vE = R.alloc(40, 4)
    a(f'v_and_b32 v{vLane}, 63, v0')
    a(f'v_lshrrev_b32 v{vT[0]}, 6, v0')
    a('s_nop 0')
    a(f'v_readfirstlane_b32 s23, v{vT[0]}')
    a('s_and_b32 s20, s2, 7')
    a('s_lshl_b32 s20, s20, 1')
    a('s_lshr_b32 s21, s2, 3')
    a('s_and_b32 s34, s21, 1')
    a('s_add_u32 s20, s20, s34')
    a('s_lshr_b32 s21, s2, 4')
    sl = vT[0]; c = vT[1]
    a(f'v_lshrrev_b32 v{sl}, 3, v0')
    a(f'v_and_b32 v{c}, 7, v0')
    a(f'v_lshlrev_b32 v{c}, 4, v{c}')
    a(f'v_mul_u32_u24 v{vAg}, 1792, v{sl}')
    a(f'v_add_u32 v{vAg}, v{vAg}, v{c}')
    a('s_lshl_b32 s34, s21, 7')
    a(f's_add_u32 s34, s34, {WS_Z2}')
    a(f'v_add_u32 v{vAg}, s34, v{vAg}')
    a(f'v_mul_u32_u24 v{vAl}, {A_RS}, v{sl}')
    a(f'v_add_u32 v{vAl}, v{vAl}, v{c}')
    a(f'v_add_u32 v{vAl}, {L_A}, v{vAl}')
    a(f'v_lshlrev_b32 v{vSt}, 3, v{sl}')
    a('s_lshl_b32 s34, s20, 19')
    a('s_lshl_b32 s35, s23, 16')
    a('s_add_u32 s34, s34, s35')
    a(f'v_lshrrev_b32 v{vT[2]}, 3, v{vLane}')
    a(f'v_lshrrev_b32 v{vT[3]}, 4, v{vLane}')
    a(f'v_and_b32 v{vT[4]}, 7, v{vLane}')
    for j in range(2):
        a(f'v_add_u32 v{vT[5]}, {4*j}, v{vT[3]}')
        a(f'v_and_b32 v{vT[5]}, 7, v{vT[5]}')
        a(f'v_xor_b32 v{vT[5]}, v{vT[5]}, v{vT[4]}')
        a(f'v_add_u32 v{vT[6]}, {8*j}, v{vT[2]}')
        a(f'v_lshlrev_b32 v{vBg[j]}, 12, v{vT[6]}')
        a(f'v_lshl_add_u32 v{vBg[j]}, v{vT[5]}, 4, v{vBg[j]}')
        a(f'v_add_u32 v{vBg[j]}, s34, v{vBg[j]}')
    a('s_lshl_b32 s35, s23, 11')
    a(f's_add_u32 s35, s35, {L_B}')
    a(f'v_lshlrev_b32 v{vT[2]}, 4, v0')
    a('s_waitcnt lgkmcnt(0)')
    srd(a, 4, 24, 25, S*S*2)
    srd(a, 8, 26, 27, S*2)
    srd(a, 16, 32, 33, WS_SIZE)
    a('s_cmp_ge_u32 s2, 224')
    a(f's_cbranch_scc1 {KV}')
    sbuf = vAcc
    for j in range(16):
        a(f's_mov_b32 s38, {WS_ST + j*8192}')
        a(f'buffer_load_dwordx4 {vr(sbuf+4*j,4)}, v{vT[2]}, s[16:19], s38 offen')
    def issue(blk):
        a(f's_mov_b32 s36, {blk*64*1792}')
        a(f's_mov_b32 s37, {blk*128}')
        a(f'buffer_load_dwordx4 {vr(vStg[blk%4],4)}, v{vAg}, s[16:19], s36 offen')
        for j in range(2):
            a(f's_add_u32 m0, s35, {(blk%4)*B_BUF + j*1024}')
            a('s_nop 0')
            a(f'buffer_load_dwordx4 v{vBg[j]}, s[4:7], s37 offen lds')
    for b in range(4):
        issue(b)
    tr_addr(a, vAad, vLane, A_RS, vT[3:7])
    a('s_lshr_b32 s40, s23, 1')
    a(f's_mul_i32 s41, s40, {16*A_RS}')
    a(f's_add_u32 s41, s41, {L_A}')
    a(f'v_add_u32 v{vAad}, s41, v{vAad}')
    a(f'v_and_b32 v{vT[3]}, 31, v{vLane}')
    a(f'v_lshrrev_b32 v{vT[4]}, 5, v{vLane}')
    a('s_lshl_b32 s41, s40, 1')
    a(f'v_add_u32 v{vT[4]}, s41, v{vT[4]}')
    a(f'v_bfe_u32 v{vT[5]}, v{vT[3]}, 1, 3')
    a(f'v_xor_b32 v{vT[4]}, v{vT[4]}, v{vT[5]}')
    a(f'v_lshlrev_b32 v{vBad}, 7, v{vT[3]}')
    a(f'v_lshl_add_u32 v{vBad}, v{vT[4]}, 4, v{vBad}')
    a('s_and_b32 s41, s23, 1')
    a('s_lshl_b32 s41, s41, 13')
    a(f's_add_u32 s41, s41, {L_B}')
    a(f'v_add_u32 v{vBad}, s41, v{vBad}')
    a('s_waitcnt vmcnt(12)')
    for tk in range(4):
        sm = vE + 2*tk + 1; sq = vE + 2*tk
        a(f'v_add_f32 v{sm}, v{sbuf+tk}, v{sbuf+8+tk}')
        a(f'v_add_f32 v{sq}, v{sbuf+4+tk}, v{sbuf+12+tk}')
        for j in range(2, 8):
            a(f'v_add_f32 v{sm}, v{sm}, v{sbuf+8*j+tk}')
            a(f'v_add_f32 v{sq}, v{sq}, v{sbuf+8*j+4+tk}')
        ln_finish(a, sm, sq, 896.0)
    a(f'v_lshlrev_b32 v{vT[3]}, 5, v0')
    a(f'ds_write_b128 v{vT[3]}, {vr(vE,4)}')
    a(f'ds_write_b128 v{vT[3]}, {vr(vE+4,4)} offset:16')
    for i in range(64):
        a(f'v_mov_b32 v{vAcc+i}, 0')
    a('s_waitcnt lgkmcnt(0)')
    a('s_barrier')

    def transform(blk, j0, j1):
        x = vStg[blk % 4]; mr = vMR[blk % 2]
        t0 = vT[5]; t1 = vT[6]
        for j in range(j0, j1):
            a(f'v_lshlrev_b32 v{t0}, 16, v{x+j}')
            a(f'v_and_b32 v{t1}, 0xffff0000, v{x+j}')
            a(f'v_fma_f32 v{t0}, v{t0}, v{mr}, -v{mr+1}')
            a(f'v_fma_f32 v{t1}, v{t1}, v{mr}, -v{mr+1}')
            a(f'v_cvt_pk_bf16_f32 v{x+j}, v{t0}, v{t1}')
    def awrite(blk):
        a(f'ds_write_b128 v{vAl}, {vr(vStg[blk%4],4)} offset:{(blk%3)*A_BUF}')
    def mr_read(blk):
        a(f'ds_read_b64 {vr(vMR[blk%2],2)}, v{vSt} offset:{512*blk}')
    def frag_read(blk):
        F = vFr[blk % 2]
        for i in range(2):
            for half in range(2):
                a(f'ds_read_b64_tr_b16 {vr(F+4*i+2*half,2)}, v{vAad} offset:{(blk%3)*A_BUF + 4*half*A_RS + 64*i}')
        for i in range(2):
            a(f'ds_read_b128 {vr(F+8+4*i,4)}, v{vBad} offset:{(blk%4)*B_BUF + 4096*i}')

    mr_read(0); mr_read(1)
    a('s_waitcnt vmcnt(6) lgkmcnt(0)')
    transform(0, 0, 4); awrite(0)
    transform(1, 0, 4); awrite(1)
    mr_read(2)
    a('s_waitcnt lgkmcnt(0)')
    a('s_barrier')
    frag_read(0)
    stamp(a, 1)
    for i in range(NBLK):
        F = vFr[i % 2]
        if i + 4 < NBLK:
            issue(i + 4)
        if i + 1 < NBLK:
            a('s_waitcnt lgkmcnt(0)')
            frag_read(i + 1)
        else:
            a('s_waitcnt lgkmcnt(0)')
        nout = 3 * sum(1 for b in (i+3, i+4) if b < NBLK)
        def mf(t):
            ii, jb = t // 2, t % 2
            a(f'v_mfma_f32_32x32x16_bf16 {vr(vAcc+16*t,16)}, {vr(F+4*ii,4)}, {vr(F+8+4*jb,4)}, {vr(vAcc+16*t,16)}')
        mf(0)
        if i + 2 < NBLK:
            a(f's_waitcnt vmcnt({nout})')
            transform(i + 2, 0, 2)
        mf(1)
        if i + 2 < NBLK:
            transform(i + 2, 2, 4)
        mf(2)
        if i + 2 < NBLK:
            awrite(i + 2)
            if i + 3 < NBLK:
                mr_read(i + 3)
        mf(3)
        if i + 1 < NBLK:
            a('s_waitcnt lgkmcnt(0)')
            a('s_barrier')
    stamp(a, 2)
    za = [vT[1], vT[2]]; ba = vT[3]
    a(f'v_lshrrev_b32 v{vT[4]}, 3, v0')
    a(f'v_and_b32 v{vT[5]}, 7, v0')
    a('s_lshl_b32 s40, s20, 7')
    a(f'v_add_u32 v{vT[6]}, s40, v{vT[4]}')
    a(f'v_lshlrev_b32 v{ba}, 1, v{vT[6]}')
    a(f'v_mul_u32_u24 v{za[0]}, 1792, v{vT[6]}')
    a(f'v_lshl_add_u32 v{za[0]}, v{vT[5]}, 4, v{za[0]}')
    a(f'v_add_u32 v{za[1]}, {64*1792}, v{za[0]}')
    a('s_lshl_b32 s41, s21, 7')
    a(f's_add_u32 s42, s41, {WS_Z1}')
    a(f's_add_u32 s43, s41, {WS_U}')
    z1 = vStg[0]; bb = vStg[2]
    for j in range(2):
        a(f'buffer_load_dwordx4 {vr(z1+4*j,4)}, v{za[j]}, s[16:19], s42 offen')
        a(f'buffer_load_ushort v{bb+j}, v{ba}, s[8:11], 0 offen offset:{128*j}')
    wa = vT[7]; ra = vT[8]
    a(f'v_and_b32 v{vT[9]}, 31, v{vLane}')
    a(f'v_mul_u32_u24 v{wa}, 272, v{vT[9]}')
    a(f'v_lshrrev_b32 v{vT[9]}, 5, v{vLane}')
    a(f'v_lshl_add_u32 v{wa}, v{vT[9]}, 4, v{wa}')
    a('s_lshr_b32 s40, s23, 1')
    a(f's_mul_i32 s40, s40, {SLAB}')
    a('s_and_b32 s41, s23, 1')
    a(f's_mul_i32 s41, s41, {64*272}')
    a('s_add_u32 s40, s40, s41')
    a(f'v_add_u32 v{wa}, s40, v{wa}')
    a(f'v_mul_u32_u24 v{ra}, 272, v{vT[4]}')
    a(f'v_lshl_add_u32 v{ra}, v{vT[5]}, 5, v{ra}')
    a('s_barrier')
    for ii in range(2):
        for jb in range(2):
            for q in range(4):
                a(f'ds_write_b128 v{wa}, {vr(vAcc+16*(2*ii+jb)+4*q,4)} offset:{jb*32*272 + (32*ii+8*q)*4}')
    a('s_waitcnt lgkmcnt(0)')
    a('s_barrier')
    for j in range(2):
        for kg in range(4):
            for h2 in range(2):
                off = kg*SLAB + j*64*272 + h2*16
                if off < 65536:
                    a(f'ds_read_b128 {vr(vAcc+32*j+8*kg+4*h2,4)}, v{ra} offset:{off}')
                else:
                    a(f'v_add_u32 v{vT[9]}, {off}, v{ra}')
                    a(f'ds_read_b128 {vr(vAcc+32*j+8*kg+4*h2,4)}, v{vT[9]}')
    a('s_waitcnt vmcnt(0) lgkmcnt(0)')
    t0 = vT[5]; t1 = vT[6]; t2 = vT[9]
    for j in range(2):
        g = vAcc + 32*j
        for kg in range(1, 4):
            for e in range(8):
                a(f'v_add_f32 v{g+e}, v{g+e}, v{g+8*kg+e}')
        a(f'v_lshlrev_b32 v{bb+j}, 16, v{bb+j}')
        for e in range(4):
            a(f'v_cvt_pk_bf16_f32 v{t2}, v{g+2*e}, v{g+2*e+1}')
            a(f'v_lshlrev_b32 v{t0}, 16, v{t2}')
            a(f'v_and_b32 v{t1}, 0xffff0000, v{t2}')
            a(f'v_add_f32 v{t0}, v{t0}, v{bb+j}')
            a(f'v_add_f32 v{t1}, v{t1}, v{bb+j}')
            a(f'v_cvt_pk_bf16_f32 v{t2}, v{t0}, v{t1}')
            a(f'v_lshlrev_b32 v{t0}, 16, v{t2}')
            a(f'v_and_b32 v{t1}, 0xffff0000, v{t2}')
            zz = z1 + 4*j + e
            a(f'v_lshlrev_b32 v{t2}, 16, v{zz}')
            a(f'v_and_b32 v{zz}, 0xffff0000, v{zz}')
            a(f'v_mul_f32 v{t0}, v{t0}, v{t2}')
            a(f'v_mul_f32 v{t1}, v{t1}, v{zz}')
            a(f'v_cvt_pk_bf16_f32 v{zz}, v{t0}, v{t1}')
        a(f'buffer_store_dwordx4 {vr(z1+4*j,4)}, v{za[j]}, s[16:19], s43 offen')
    a(f's_branch {END}')

    a.lab(KV)
    a('s_sub_u32 s20, s2, 224')
    PRS = 192
    vFrK = vFr[0]
    pg = vT[3]; pl = vT[4]; vg = vT[5]; vl = vT[6]
    a(f'v_lshrrev_b32 v{vT[0]}, 3, v{vLane}')
    a(f'v_and_b32 v{vT[1]}, 7, v{vLane}')
    a(f'v_lshlrev_b32 v{pg}, 11, v{vT[0]}')
    a(f'v_lshl_add_u32 v{pg}, v{vT[1]}, 4, v{pg}')
    a(f'v_mul_u32_u24 v{pl}, {PRS}, v{vT[0]}')
    a(f'v_lshl_add_u32 v{pl}, v{vT[1]}, 4, v{pl}')
    a('s_lshl_b32 s40, s23, 14')
    a(f'v_add_u32 v{pl}, s40, v{pl}')
    a(f'v_mul_u32_u24 v{vg}, 896, v{vT[0]}')
    a(f'v_lshl_add_u32 v{vg}, v{vT[1]}, 3, v{vg}')
    a(f'v_lshlrev_b32 v{vl}, 6, v{vT[0]}')
    a(f'v_lshl_add_u32 v{vl}, v{vT[1]}, 3, v{vl}')
    a(f'v_add_u32 v{vl}, s40, v{vl}')
    a(f'v_add_u32 v{vl}, {64*PRS}, v{vl}')
    a(f'v_cmp_eq_u32 s[44:45], 7, v{vT[1]}')
    a('s_lshl_b32 s41, s23, 19')
    a('s_lshl_b32 s42, s20, 7')
    a('s_add_u32 s41, s41, s42')
    a(f's_add_u32 s41, s41, {WS_PHIK}')
    a(f's_mul_i32 s42, s23, {256*896}')
    a('s_mul_i32 s43, s20, 56')
    a('s_add_u32 s42, s42, s43')
    a(f's_add_u32 s42, s42, {WS_V}')
    fa = vT[8]; fb = vT[9]
    tr_addr(a, fb, vLane, PRS, [vE, vE+1, vE+2, vE+3])
    a(f'v_add_u32 v{fb}, s40, v{fb}')
    tr_addr(a, fa, vLane, 64, [vE, vE+1, vE+2, vE+3])
    a(f'v_add_u32 v{fa}, s40, v{fa}')
    a(f'v_add_u32 v{fa}, {64*PRS}, v{fa}')
    for i in range(32):
        a(f'v_mov_b32 v{vAcc+i}, 0')
    one = vE + 36
    a(f'v_mov_b32 v{one}, 0x00003f80')
    pbuf = vAcc + 32
    vbuf = vFr[1]
    def kv_issue(ch):
        for i in range(8):
            a(f's_add_u32 s46, s41, {(ch*64 + 8*i)*2048}')
            a(f'buffer_load_dwordx4 {vr(pbuf+4*i,4)}, v{pg}, s[16:19], s46 offen')
        for i in range(8):
            a(f's_add_u32 s46, s42, {(ch*64 + 8*i)*896}')
            a(f'buffer_load_dwordx2 {vr(vbuf+2*i,2)}, v{vg}, s[16:19], s46 offen')
    kv_issue(0)
    for ch in range(4):
        a('s_waitcnt vmcnt(0)')
        for i in range(8):
            a(f'ds_write_b128 v{pl}, {vr(pbuf+4*i,4)} offset:{8*i*PRS}')
        for i in range(8):
            a(f'v_cndmask_b32 v{vbuf+2*i}, v{vbuf+2*i}, v{one}, s[44:45]')
            a(f'v_cndmask_b32 v{vbuf+2*i+1}, v{vbuf+2*i+1}, 0, s[44:45]')
            a(f'ds_write_b64 v{vl}, {vr(vbuf+2*i,2)} offset:{8*i*64}')
        a('s_waitcnt lgkmcnt(0)')
        if ch < 3:
            kv_issue(ch + 1)
        for ks in range(4):
            for half in range(2):
                a(f'ds_read_b64_tr_b16 {vr(vFrK+2*half,2)}, v{fa} offset:{(16*ks+4*half)*64}')
                a(f'ds_read_b64_tr_b16 {vr(vFrK+4+2*half,2)}, v{fb} offset:{(16*ks+4*half)*PRS}')
                a(f'ds_read_b64_tr_b16 {vr(vFrK+8+2*half,2)}, v{fb} offset:{(16*ks+4*half)*PRS + 64}')
            a('s_waitcnt lgkmcnt(0)')
            a(f'v_mfma_f32_32x32x16_bf16 {vr(vAcc,16)}, {vr(vFrK,4)}, {vr(vFrK+4,4)}, {vr(vAcc,16)}')
            a(f'v_mfma_f32_32x32x16_bf16 {vr(vAcc+16,16)}, {vr(vFrK,4)}, {vr(vFrK+8,4)}, {vr(vAcc+16,16)}')
    a.nop(16)
    a('s_barrier')
    tl = vT[0]; hh = vT[1]; bad = vT[3]
    a(f'v_and_b32 v{tl}, 31, v{vLane}')
    a(f'v_lshrrev_b32 v{hh}, 5, v{vLane}')
    a(f'v_lshlrev_b32 v{bad}, 2, v{tl}')
    a(f'v_lshl_add_u32 v{bad}, v{hh}, 10, v{bad}')
    a('s_lshl_b32 s40, s23, 13')
    a(f'v_add_u32 v{bad}, s40, v{bad}')
    for nt in range(2):
        for q in range(4):
            for i in range(4):
                a(f'ds_write_b32 v{bad}, v{vAcc+16*nt+4*q+i} offset:{(8*q+i)*256 + nt*128}')
    a('s_waitcnt lgkmcnt(0)')
    a('s_barrier')
    a(f'v_lshlrev_b32 v{bad}, 4, v0')
    for w in range(8):
        a(f'ds_read_b128 {vr(vE+4*w,4)}, v{bad} offset:{8192*w}')
    a('s_waitcnt lgkmcnt(0)')
    for w in range(1, 8):
        for j in range(4):
            a(f'v_add_f32 v{vE+j}, v{vE+j}, v{vE+4*w+j}')
    a(f'v_cvt_pk_bf16_f32 v{vE}, v{vE}, v{vE+1}')
    a(f'v_cvt_pk_bf16_f32 v{vE+1}, v{vE+2}, v{vE+3}')
    a(f'v_bfe_u32 v{vT[4]}, v0, 2, 2')
    a(f'v_bfe_u32 v{vT[5]}, v0, 1, 1')
    a(f'v_and_b32 v{vT[6]}, 1, v0')
    a(f'v_lshrrev_b32 v{vT[7]}, 4, v0')
    a(f'v_lshl_add_u32 v{vT[7]}, v{vT[5]}, 5, v{vT[7]}')
    a(f'v_lshlrev_b32 v{bad}, 4, v{vT[7]}')
    a(f'v_lshl_add_u32 v{bad}, v{vT[4]}, 10, v{bad}')
    a(f'v_lshl_add_u32 v{bad}, v{vT[6]}, 3, v{bad}')
    a('s_lshl_b32 s40, s20, 12')
    a(f's_add_u32 s40, s40, {WS_KVT}')
    a(f'buffer_store_dwordx2 {vr(vE,2)}, v{bad}, s[16:19], s40 offen')
    a.lab(END)
    stamp(a, 3)
    stamp_flush(a, 4, 1, vE)
    a.lab(END + '_x')
    a('s_endpgm')
    return name, R.hi, LDS

def gen_k3(a):
    name = 'k3_out_kernel'
    header(a, name)
    END = 'k3_end'
    O_RS = 912
    L_PH = 64*O_RS
    L_W = L_PH + 32768
    SLAB = 64*272
    LDS = L_W + 4*8192
    NB = 21
    a('s_cmp_ge_u32 s2, 224')
    a(f's_cbranch_scc1 {END}_x')
    a('s_load_dwordx2 s[24:25], s[0:1], 0')
    a('s_load_dwordx2 s[26:27], s[0:1], 24')
    a('s_load_dwordx4 s[28:31], s[0:1], 64')
    a('s_load_dwordx2 s[32:33], s[0:1], 88')
    stamp(a, 0)
    R = Regs(1)
    vLane = R.alloc()
    vT = [R.alloc() for _ in range(10)]
    vWg = R.alloc(); vUg = R.alloc()
    vAad = [R.alloc(), R.alloc()]; vBo = R.alloc(); vBu = R.alloc()
    vAcc = R.alloc(32, 4)
    vFr = R.alloc(12, 4)
    vE = R.alloc(96, 4)
    a(f'v_and_b32 v{vLane}, 63, v0')
    a(f'v_lshrrev_b32 v{vT[0]}, 6, v0')
    a('s_nop 0')
    a(f'v_readfirstlane_b32 s23, v{vT[0]}')
    a('s_and_b32 s20, s2, 7')
    a('s_lshl_b32 s20, s20, 2')
    a('s_lshr_b32 s21, s2, 3')
    a('s_and_b32 s34, s21, 3')
    a('s_add_u32 s20, s20, s34')
    a('s_lshr_b32 s21, s2, 5')
    l3 = vT[0]; l4 = vT[1]; l7 = vT[2]
    a(f'v_lshrrev_b32 v{l3}, 3, v{vLane}')
    a(f'v_lshrrev_b32 v{l4}, 4, v{vLane}')
    a(f'v_and_b32 v{l7}, 7, v{vLane}')
    tl = vT[3]; hh = vT[4]; ka = vT[5]
    a(f'v_and_b32 v{tl}, 31, v{vLane}')
    a(f'v_lshrrev_b32 v{hh}, 5, v{vLane}')
    a(f'v_lshlrev_b32 v{ka}, 4, v{vLane}')
    a('s_lshl_b32 s41, s20, 17')
    a('s_lshl_b32 s42, s23, 13')
    a('s_add_u32 s41, s41, s42')
    a(f's_add_u32 s41, s41, {WS_PHIQ}')
    a(f's_add_u32 s40, s42, {WS_KVT}')
    a('s_waitcnt lgkmcnt(0)')
    stamp(a, 4)
    srd(a, 16, 32, 33, WS_SIZE)
    for ah in range(2):
        base = vE + 48*ah
        for ks in range(4):
            a(f's_add_u32 s46, s40, {ah*4096 + ks*1024}')
            a(f'buffer_load_dwordx4 {vr(base+4*ks,4)}, v{ka}, s[16:19], s46 offen')
        for tt in range(2):
            for ks in range(4):
                a(f's_add_u32 s46, s41, {tt*65536 + ah*4096 + ks*1024}')
                a(f'buffer_load_dwordx4 {vr(base+16+16*tt+4*ks,4)}, v{ka}, s[16:19], s46 offen')
    srd(a, 4, 24, 25, S*D*2)
    srd(a, 8, 26, 27, D*D*2)
    srd(a, 12, 28, 29, FH*D*2)
    srd(a, 48, 30, 31, S*D*2)
    a(f'v_and_b32 v{vT[6]}, 1, v{l4}')
    a(f'v_lshlrev_b32 v{vT[6]}, 2, v{vT[6]}')
    a(f'v_xor_b32 v{vT[6]}, v{vT[6]}, v{l7}')
    a('s_lshl_b32 s34, s23, 3')
    a(f'v_add_u32 v{vT[7]}, s34, v{l3}')
    a(f'v_mul_u32_u24 v{vWg}, 896, v{vT[7]}')
    a(f'v_lshl_add_u32 v{vWg}, v{vT[6]}, 4, v{vWg}')
    a('s_lshl_b32 s34, s21, 7')
    a(f'v_add_u32 v{vWg}, s34, v{vWg}')
    a('s_lshl_b32 s34, s23, 2')
    a(f'v_add_u32 v{vT[6]}, s34, v{l4}')
    a(f'v_and_b32 v{vT[6]}, 7, v{vT[6]}')
    a(f'v_xor_b32 v{vT[6]}, v{vT[6]}, v{l7}')
    a(f'v_mul_u32_u24 v{vUg}, 1792, v{vT[7]}')
    a(f'v_lshl_add_u32 v{vUg}, v{vT[6]}, 4, v{vUg}')
    a(f's_mul_i32 s34, s20, {64*1792}')
    a(f's_add_u32 s34, s34, {WS_U}')
    a(f'v_add_u32 v{vUg}, s34, v{vUg}')
    a('s_lshl_b32 s47, s23, 10')
    def w_dma(blk):
        a(f's_add_u32 m0, s47, {L_W + (blk%4)*8192}')
        if blk < 7:
            a(f's_mov_b32 s36, {blk*64*896}')
            a(f'buffer_load_dwordx4 v{vWg}, s[8:11], s36 offen lds')
        else:
            a(f's_mov_b32 s36, {(blk-7)*64*896}')
            a(f'buffer_load_dwordx4 v{vWg}, s[12:15], s36 offen lds')
    def u_dma(blk):
        a(f's_add_u32 m0, s47, {L_PH + (blk%4)*8192}')
        a(f's_mov_b32 s36, {(blk-7)*128}')
        a(f'buffer_load_dwordx4 v{vUg}, s[16:19], s36 offen lds')
    for b in range(3):
        w_dma(b)
    oa = vT[8]
    a(f'v_mul_u32_u24 v{oa}, {O_RS}, v{tl}')
    a(f'v_lshl_add_u32 v{oa}, v{hh}, 3, v{oa}')
    a('s_mul_i32 s43, s23, 112')
    a(f'v_add_u32 v{oa}, s43, v{oa}')
    d0 = vT[5]; d1 = vT[6]; dn = vT[7]
    for ah in range(2):
        base = vE + 48*ah
        if ah == 0: stamp(a, 5)
        a(f's_waitcnt vmcnt({15 if ah == 0 else 3})')
        stamp(a, 6 + ah)
        for tt in range(2):
            for ks in range(4):
                cc_ = '0' if ks == 0 else vr(vAcc+16*tt, 16)
                a(f'v_mfma_f32_32x32x16_bf16 {vr(vAcc+16*tt,16)}, {vr(base+4*ks,4)}, {vr(base+16+16*tt+4*ks,4)}, {cc_}')
        a.nop(12)
        for tt in range(2):
            acc = vAcc + 16*tt
            a(f'v_mov_b32 v{d0}, v{acc+12}')
            a(f'v_mov_b32 v{d1}, v{acc+12}')
            a('s_nop 1')
            a(f'v_permlane32_swap_b32 v{d0}, v{d1}')
            a('s_nop 1')
            bf16_round(a, dn, d1)
            a(f'v_add_f32 v{dn}, {f2u(1e-6)}, v{dn}')
            bf16_round(a, dn, dn)
            a(f'v_rcp_f32 v{dn}, v{dn}')
            for j in range(8):
                a(f'v_cvt_pk_bf16_f32 v{d0}, v{acc+2*j}, v{acc+2*j+1}')
                a(f'v_lshlrev_b32 v{acc+2*j}, 16, v{d0}')
                a(f'v_and_b32 v{acc+2*j+1}, 0xffff0000, v{d0}')
            for j in range(16):
                a(f'v_mul_f32 v{acc+j}, v{acc+j}, v{dn}')
            for j in range(8):
                a(f'v_cvt_pk_bf16_f32 v{acc+j}, v{acc+2*j}, v{acc+2*j+1}')
            for q in range(4):
                if q == 3:
                    a('s_mov_b64 exec, 0xffffffff')
                a(f'ds_write_b64 v{oa}, {vr(acc+2*q,2)} offset:{tt*32*O_RS + ah*56 + q*16}')
                if q == 3:
                    a('s_mov_b64 exec, -1')
    G1, G2, rr, cc = vT[0], vT[1], vT[2], vT[3]
    a(f'v_bfe_u32 v{G1}, v{vLane}, 4, 1')
    a(f'v_lshrrev_b32 v{G2}, 5, v{vLane}')
    a(f'v_bfe_u32 v{rr}, v{vLane}, 2, 2')
    a(f'v_and_b32 v{cc}, 3, v{vLane}')
    a(f'v_lshl_add_u32 v{cc}, v{G1}, 2, v{cc}')
    a(f'v_lshrrev_b32 v{vT[4]}, 1, v{rr}')
    a(f'v_lshl_add_u32 v{rr}, v{G2}, 3, v{rr}')
    a(f'v_lshlrev_b32 v{rr}, 7, v{rr}')
    a(f'v_lshl_add_u32 v{rr}, v{cc}, 3, v{rr}')
    a('s_lshr_b32 s40, s23, 1')
    a('s_lshl_b32 s41, s40, 11')
    a(f's_add_u32 s41, s41, {L_W}')
    a(f'v_add_u32 v{rr}, s41, v{rr}')
    a(f'v_lshl_add_u32 v{vAad[0]}, v{vT[4]}, 6, v{rr}')
    a(f'v_xor_b32 v{vT[4]}, 1, v{vT[4]}')
    a(f'v_lshl_add_u32 v{vAad[1]}, v{vT[4]}, 6, v{rr}')
    a(f'v_and_b32 v{vT[4]}, 31, v{vLane}')
    a(f'v_lshrrev_b32 v{vT[5]}, 5, v{vLane}')
    a('s_and_b32 s41, s23, 1')
    a('s_lshl_b32 s41, s41, 5')
    a(f'v_add_u32 v{vT[4]}, s41, v{vT[4]}')
    a('s_lshl_b32 s42, s40, 5')
    a(f'v_mul_u32_u24 v{vBo}, {O_RS}, v{vT[4]}')
    a(f'v_lshl_add_u32 v{vBo}, v{vT[5]}, 4, v{vBo}')
    a(f'v_add_u32 v{vBo}, s42, v{vBo}')
    a('s_lshl_b32 s42, s40, 1')
    a(f'v_add_u32 v{vT[5]}, s42, v{vT[5]}')
    a(f'v_bfe_u32 v{vT[6]}, v{vT[4]}, 1, 3')
    a(f'v_xor_b32 v{vT[5]}, v{vT[5]}, v{vT[6]}')
    a(f'v_lshlrev_b32 v{vBu}, 7, v{vT[4]}')
    a(f'v_lshl_add_u32 v{vBu}, v{vT[5]}, 4, v{vBu}')
    a(f'v_add_u32 v{vBu}, {L_PH}, v{vBu}')
    for i in range(32):
        a(f'v_mov_b32 v{vAcc+i}, 0')
    xa = vT[9]; xv = vE
    a(f'v_lshrrev_b32 v{vT[4]}, 3, v0')
    a(f'v_and_b32 v{vT[5]}, 7, v0')
    a('s_lshl_b32 s41, s20, 6')
    a(f'v_add_u32 v{vT[6]}, s41, v{vT[4]}')
    a(f'v_mul_u32_u24 v{xa}, 896, v{vT[6]}')
    a(f'v_lshl_add_u32 v{xa}, v{vT[5]}, 4, v{xa}')
    a('s_lshl_b32 s52, s21, 7')
    a(f'buffer_load_dwordx4 {vr(xv,4)}, v{xa}, s[4:7], s52 offen')
    a('s_waitcnt lgkmcnt(0)')
    a('s_barrier')
    stamp(a, 1)
    ops = []
    ops += [('x', -1)]
    issued = [('w', 0), ('w', 1), ('w', 2), ('x', -1)]
    for blk in range(NB):
        nb = blk + 3
        if nb < NB:
            w_dma(nb); issued.append(('w', nb))
            if nb >= 7:
                u_dma(nb); issued.append(('u', nb))
        if blk == 0:
            later = len([1 for (k, b) in issued[issued.index(('w', 0))+1:]])
            a(f's_waitcnt vmcnt({later})')
            a('s_barrier')
        for i in range(2):
            for half in range(2):
                a(f'ds_read_b64_tr_b16 {vr(vFr+4*i+2*half,2)}, v{vAad[i]} offset:{(blk%4)*8192 + 4*half*128}')
        if blk < 7:
            a(f'ds_read_b128 {vr(vFr+8,4)}, v{vBo} offset:{blk*128}')
        else:
            a(f'ds_read_b128 {vr(vFr+8,4)}, v{vBu} offset:{(blk%4)*8192}')
        a('s_waitcnt lgkmcnt(0)')
        for i in range(2):
            a(f'v_mfma_f32_32x32x16_bf16 {vr(vAcc+16*i,16)}, {vr(vFr+4*i,4)}, {vr(vFr+8,4)}, {vr(vAcc+16*i,16)}')
        if blk + 1 < NB:
            last = max(idx for idx, (k, b) in enumerate(issued) if b == blk + 1)
            a(f's_waitcnt vmcnt({len(issued) - 1 - last})')
            a('s_barrier')
    stamp(a, 2)
    a.nop(8)
    a('s_barrier')
    wa = vT[0]; ra = vT[1]
    a(f'v_and_b32 v{vT[2]}, 31, v{vLane}')
    a(f'v_mul_u32_u24 v{wa}, 272, v{vT[2]}')
    a(f'v_lshrrev_b32 v{vT[2]}, 5, v{vLane}')
    a(f'v_lshl_add_u32 v{wa}, v{vT[2]}, 4, v{wa}')
    a(f's_mul_i32 s41, s40, {SLAB}')
    a('s_and_b32 s42, s23, 1')
    a(f's_mul_i32 s42, s42, {32*272}')
    a('s_add_u32 s41, s41, s42')
    a(f'v_add_u32 v{wa}, s41, v{wa}')
    for ii in range(2):
        for q in range(4):
            a(f'ds_write_b128 v{wa}, {vr(vAcc+16*ii+4*q,4)} offset:{(32*ii+8*q)*4}')
    a(f'v_mul_u32_u24 v{ra}, 272, v{vT[4]}')
    a(f'v_lshl_add_u32 v{ra}, v{vT[5]}, 5, v{ra}')
    a('s_waitcnt lgkmcnt(0)')
    a('s_barrier')
    g = vE + 8
    for kg in range(4):
        for h2 in range(2):
            a(f'ds_read_b128 {vr(g+8*kg+4*h2,4)}, v{ra} offset:{kg*SLAB + h2*16}')
    a('s_waitcnt vmcnt(0) lgkmcnt(0)')
    for kg in range(1, 4):
        for e in range(8):
            a(f'v_add_f32 v{g+e}, v{g+e}, v{g+8*kg+e}')
    t0 = vT[6]
    for e in range(4):
        xx = xv + e
        a(f'v_lshlrev_b32 v{t0}, 16, v{xx}')
        a(f'v_and_b32 v{xx}, 0xffff0000, v{xx}')
        a(f'v_add_f32 v{g+2*e}, v{g+2*e}, v{t0}')
        a(f'v_add_f32 v{g+2*e+1}, v{g+2*e+1}, v{xx}')
        a(f'v_cvt_pk_bf16_f32 v{xx}, v{g+2*e}, v{g+2*e+1}')
    a(f'buffer_store_dwordx4 {vr(xv,4)}, v{xa}, s[48:51], s52 offen')
    a.lab(END)
    stamp(a, 3)
    stamp_flush(a, 8, 2, vE)
    a.lab(END + '_x')
    a('s_endpgm')
    return name, R.hi, LDS

def main():
    a = Asm()
    infos = []
    infos.append(gen_k1(a) + (224,))
    infos.append(gen_k2(a) + (240,))
    infos.append(gen_k3(a) + (224,))
    out = []
    for n, nv, lds, g in infos:
        out.append(f'; @launch kernel={n} grid=({g},1,1) block=(512,1,1) lds={lds}')
    out.append('.amdgcn_target "amdgcn-amd-amdhsa--gfx950"')
    out.append('.text')
    out += a.L
    out.append('.section .rodata,"a"')
    for n, nv, lds, g in infos:
        out.append('.p2align 6')
        out.append(descriptor(n, nv))
    open(sys.argv[1] if len(sys.argv) > 1 else 'parallel_sum__linear_kernel_hedgehog__mixer_gmlp__prompt.s', 'w').write('\n'.join(out) + '\n')
    for i in infos: print(i, file=sys.stderr)

main()
```

```python
import sys, struct, os

def f2u(x):
    return struct.unpack('<I', struct.pack('<f', x))[0]

class Asm:
    def __init__(s):
        s.L = []; s.uid = 0
    def __call__(s, t):
        s.L.append('    ' + t)
    def lab(s, l):
        s.L.append(l + ':')
    def newlab(s, p='L'):
        s.uid += 1
        return f'{p}_{s.uid}'
    def nop(s, n):
        while n > 0:
            k = min(n, 16)
            s(f's_nop {k-1}')
            n -= k

class Regs:
    def __init__(s, start=0):
        s.n = start; s.hi = start
    def alloc(s, n=1, align=1):
        s.n = (s.n + align - 1) // align * align
        r = s.n
        s.n += n
        s.hi = max(s.hi, s.n)
        return r

def vr(b, n=1):
    return f'v{b}' if n == 1 else f'v[{b}:{b+n-1}]'

S = 2048; D = 448; H = 16; DH = 28; FH = 896
WS_PHIQ = 0
WS_PHIK = WS_PHIQ + S*H*64*2
WS_V = WS_PHIK + S*H*64*2
WS_Z1 = WS_V + S*D*2 + 4096
WS_Z2 = WS_Z1 + S*FH*2
WS_U = WS_Z2 + S*FH*2
WS_ST = WS_U + S*FH*2
WS_KVT = WS_ST + S*8*2*4
WS_END = WS_KVT + H*32*64*2
WS_SIZE = 268435456

L2E = 1.4426950408889634
GELU_K = -2.0 * 0.7978845608028654 * L2E
OOB = 0x40000000

STAMP = bool(os.environ.get('STAMP'))
WS_STAMP = 200*1024*1024
def stamp(a, i):
    if STAMP:
        a(f's_memtime s[{64+2*i}:{65+2*i}]')
        a('s_waitcnt lgkmcnt(0)')
def stamp_flush(a, n, kidx, tmpv):
    if not STAMP: return
    a('s_mov_b64 exec, 1')
    a('s_lshl_b32 s60, s2, 3')
    a('s_add_u32 s60, s60, s23')
    a('s_lshl_b32 s60, s60, 6')
    a(f's_add_u32 s60, s60, {WS_STAMP + kidx*1024*1024}')
    a(f'v_mov_b32 v{tmpv+1}, 0')
    for i in range(n):
        a(f'v_mov_b32 v{tmpv}, s{64+2*i}')
        a(f'buffer_store_dword v{tmpv}, v{tmpv+1}, s[16:19], s60 offen offset:{4*i}')
        a('s_nop 1')
    a('s_mov_b64 exec, -1')

def srd(a, d, lo, hi, nbytes):
    a(f's_mov_b32 s{d}, s{lo}')
    a(f's_and_b32 s{d+1}, s{hi}, 0xffff')
    a(f's_mov_b32 s{d+2}, {nbytes}')
    a(f's_mov_b32 s{d+3}, 0x00020000')

def bf16_round(a, dst, src):
    a(f'v_cvt_pk_bf16_f32 v{dst}, v{src}, v{src}')
    a(f'v_lshlrev_b32 v{dst}, 16, v{dst}')

def xhalf(a, x, t0, t1, op, dst):
    a(f'v_mov_b32 v{t0}, v{x}')
    a(f'v_mov_b32 v{t1}, v{x}')
    a('s_nop 1')
    a(f'v_permlane32_swap_b32 v{t0}, v{t1}')
    a('s_nop 1')
    a(f'{op} v{dst}, v{t0}, v{t1}')

def ln_finish(a, sm, sq, n):
    inv = f2u(1.0/n)
    a(f'v_mul_f32 v{sm}, {inv}, v{sm}')
    a(f'v_mul_f32 v{sq}, {inv}, v{sq}')
    a(f'v_fma_f32 v{sq}, -v{sm}, v{sm}, v{sq}')
    a(f'v_max_f32 v{sq}, 0, v{sq}')
    bf16_round(a, sm, sm)
    bf16_round(a, sq, sq)
    a(f'v_add_f32 v{sq}, {f2u(1e-5)}, v{sq}')
    bf16_round(a, sq, sq)
    a(f'v_sqrt_f32 v{sq}, v{sq}')
    a('s_nop 0')
    bf16_round(a, sq, sq)
    a(f'v_rcp_f32 v{sq}, v{sq}')
    a('s_nop 0')
    a(f'v_mul_f32 v{sm}, v{sm}, v{sq}')

def header(a, name):
    a.L.append('.p2align 8')
    a.L.append(f'.globl {name}')
    a.L.append(f'.type {name},@function')
    a.lab(name)

def descriptor(name, nv, ns=102):
    nv8 = (nv + 7) // 8 * 8
    return f""".amdhsa_kernel {name}
  .amdhsa_next_free_vgpr {nv8}
  .amdhsa_next_free_sgpr {ns}
  .amdhsa_accum_offset {nv8}
  .amdhsa_group_segment_fixed_size 0
  .amdhsa_kernarg_size 96
  .amdhsa_user_sgpr_count 2
  .amdhsa_user_sgpr_kernarg_segment_ptr 1
  .amdhsa_system_sgpr_workgroup_id_x 1
.end_amdhsa_kernel
"""

def tr_addr(a, dst, vLane, rs, T):
    G1, G2, rr, cc = T[0], T[1], T[2], T[3]
    a(f'v_bfe_u32 v{G1}, v{vLane}, 4, 1')
    a(f'v_lshrrev_b32 v{G2}, 5, v{vLane}')
    a(f'v_bfe_u32 v{rr}, v{vLane}, 2, 2')
    a(f'v_and_b32 v{cc}, 3, v{vLane}')
    a(f'v_lshl_add_u32 v{rr}, v{G2}, 3, v{rr}')
    a(f'v_mul_u32_u24 v{dst}, {rs}, v{rr}')
    a(f'v_lshl_add_u32 v{cc}, v{G1}, 2, v{cc}')
    a(f'v_lshl_add_u32 v{dst}, v{cc}, 3, v{dst}')

K1_WB = 14336
K1_W = 114688
K1_LDS = K1_W + 3*K1_WB

def gen_k1(a):
    name = 'k1_proj_kernel'
    header(a, name)
    END = 'k1_end'
    a('s_cmp_ge_u32 s2, 224')
    a(f's_cbranch_scc1 {END}_x')
    a('s_load_dwordx4 s[24:27], s[0:1], 0')
    a('s_load_dwordx2 s[28:29], s[0:1], 16')
    a('s_load_dwordx2 s[30:31], s[0:1], 40')
    a('s_load_dwordx2 s[32:33], s[0:1], 88')
    a('s_load_dwordx2 s[54:55], s[0:1], 48')
    stamp(a, 0)
    a('s_and_b32 s20, s2, 7')
    a('s_lshl_b32 s20, s20, 1')
    a('s_lshr_b32 s21, s2, 3')
    a('s_and_b32 s34, s21, 1')
    a('s_add_u32 s20, s20, s34')
    a('s_lshr_b32 s21, s2, 4')
    R = Regs(1)
    vLane = R.alloc()
    vT = [R.alloc() for _ in range(8)]
    vWg = [R.alloc(), R.alloc()]
    vAad = R.alloc(); vBad = [R.alloc() for _ in range(4)]
    vAcc = R.alloc(64, 4)
    vFr = R.alloc(40, 4)
    vPhi = R.alloc(16, 4)
    vE = R.alloc(48, 4)
    vU = R.alloc(48, 4)
    vXg = vFr
    a(f'v_and_b32 v{vLane}, 63, v0')
    a(f'v_lshrrev_b32 v{vT[0]}, 6, v0')
    a(f'v_lshlrev_b32 v{vT[1]}, 4, v0')
    a(f'v_readfirstlane_b32 s23, v{vT[0]}')
    a('s_mul_i32 s34, s23, 896')
    a(f'v_add_u32 v{vT[2]}, s34, v{vLane}')
    for j in range(14):
        pos = vT[3]; row = vT[4]; p = vT[5]; t6 = vT[6]
        a(f'v_add_u32 v{pos}, {64*j}, v{vT[2]}')
        a(f'v_mul_u32_u24 v{row}, 18725, v{pos}')
        a(f'v_lshrrev_b32 v{row}, 20, v{row}')
        a(f'v_lshrrev_b32 v{t6}, 1, v{row}')
        a(f'v_and_b32 v{t6}, 7, v{t6}')
        a(f'v_xor_b32 v{pos}, v{pos}, v{t6}') if False else None
        a(f'v_mul_u32_u24 v{p}, 56, v{row}')
        a(f'v_sub_u32 v{p}, v{pos}, v{p}')
        a(f'v_xor_b32 v{t6}, v{t6}, v{p}')
        a(f'v_and_b32 v{t6}, 7, v{t6}')
        a(f'v_and_b32 v{p}, 0xfffffff8, v{pos}') if False else None
        a(f'v_sub_u32 v{pos}, v{pos}, v{p}')
        a(f'v_and_b32 v{p}, 56, v{p}')
        a(f'v_add3_u32 v{pos}, v{pos}, v{p}, v{t6}')
        a(f'v_lshlrev_b32 v{vXg+j}, 4, v{pos}')
    a('s_mul_i32 s38, s20, 114688')
    a('s_mul_i32 s35, s23, 14336')
    a('s_waitcnt lgkmcnt(0)')
    stamp(a, 4)
    srd(a, 4, 24, 25, S*D*2)
    for j in range(14):
        a(f's_add_u32 m0, s35, {1024*j}')
        a('s_nop 0')
        a(f'buffer_load_dwordx4 v{vXg+j}, s[4:7], s38 offen lds')
    srd(a, 12, 28, 29, H*DH*DH*2)
    srd(a, 16, 32, 33, WS_SIZE)
    a('s_cmp_lt_u32 s21, 6')
    a('s_mov_b32 s22, 2688')
    a('s_cselect_b32 s22, s22, 3584')
    a('s_cselect_b32 s34, s26, s30')
    a('s_cselect_b32 s35, s27, s31')
    a(f's_mov_b32 s36, {D*3*D*2}')
    a(f's_cselect_b32 s36, s36, {D*4*D*2}')
    a('s_cselect_b32 s37, 0, 6')
    a('s_sub_u32 s37, s21, s37')
    a('s_mul_i32 s37, s37, 448')
    a('s_add_u32 s8, s34, s37')
    a('s_addc_u32 s9, s35, 0')
    a('s_and_b32 s9, s9, 0xffff')
    a('s_sub_u32 s10, s36, s37')
    a('s_mov_b32 s11, 0x00020000')
    a('s_lshl_b32 s34, s23, 7')
    a(f'v_add_u32 v{vT[2]}, s34, v{vLane}')
    for j in range(2):
        c = vT[3]; row = vT[4]; col = vT[5]
        a(f'v_add_u32 v{c}, {64*j}, v{vT[2]}')
        a(f'v_mul_u32_u24 v{row}, 2341, v{c}')
        a(f'v_lshrrev_b32 v{row}, 16, v{row}')
        a(f'v_mul_u32_u24 v{col}, 28, v{row}')
        a(f'v_sub_u32 v{col}, v{c}, v{col}')
        a(f'v_lshlrev_b32 v{col}, 4, v{col}')
        a(f'v_mul_lo_u32 v{vWg[j]}, v{row}, s22')
        a(f'v_add_u32 v{vWg[j]}, v{vWg[j]}, v{col}')
    a('s_lshl_b32 s48, s23, 11')
    a(f's_add_u32 s48, s48, {K1_W}')
    def w_dma(blk):
        lab = a.newlab('k1w')
        a('s_cmp_eq_u32 s23, 7')
        a(f's_cbranch_scc1 {lab}')
        a(f's_mul_i32 s38, s22, {32*blk}')
        for j in range(2):
            a(f's_add_u32 m0, s48, {(blk%3)*K1_WB + j*1024}')
            a('s_nop 0')
            a(f'buffer_load_dwordx4 v{vWg[j]}, s[8:11], s38 offen lds')
        a.lab(lab)
    w_dma(0)
    w_dma(1)
    a('s_and_b32 s39, s21, 1')
    a('s_mul_i32 s40, s39, 12544')
    vPl = vE
    a(f'v_add_u32 v{vT[2]}, 8192, v{vT[1]}')
    a(f'buffer_load_dwordx4 {vr(vPl,4)}, v{vT[1]}, s[12:15], s40 offen')
    a(f'v_mov_b32 v{vT[3]}, {OOB}')
    a('v_cmp_gt_u32 vcc, 272, v0')
    a('s_nop 1')
    a(f'v_cndmask_b32 v{vT[2]}, v{vT[3]}, v{vT[2]}, vcc')
    a(f'buffer_load_dwordx4 {vr(vPl+4,4)}, v{vT[2]}, s[12:15], s40 offen')
    tr_addr(a, vAad, vLane, 448, vT[2:6])
    a(f'v_add_u32 v{vAad}, {K1_W}, v{vAad}')
    a(f'v_and_b32 v{vT[2]}, 31, v{vLane}')
    a(f'v_lshrrev_b32 v{vT[3]}, 5, v{vLane}')
    a(f'v_bfe_u32 v{vT[4]}, v{vT[2]}, 1, 3')
    for m in range(4):
        a(f'v_add_u32 v{vT[5]}, {2*m}, v{vT[3]}')
        a(f'v_xor_b32 v{vT[5]}, v{vT[5]}, v{vT[4]}')
        a(f'v_mul_u32_u24 v{vBad[m]}, 896, v{vT[2]}')
        a(f'v_lshl_add_u32 v{vBad[m]}, v{vT[5]}, 4, v{vBad[m]}')
    stamp(a, 5)
    a('s_waitcnt vmcnt(0)')
    stamp(a, 6)
    a(f'v_add_u32 v{vT[2]}, {K1_W + 2*K1_WB}, v{vT[1]}')
    a(f'ds_write_b128 v{vT[2]}, {vr(vPl,4)}')
    a('v_cmp_gt_u32 vcc, 320, v0')
    a('s_and_saveexec_b64 s[50:51], vcc')
    a(f'ds_write_b128 v{vT[2]}, {vr(vPl+4,4)} offset:8192')
    a('s_mov_b64 exec, -1')
    a('s_waitcnt lgkmcnt(0)')
    a('s_barrier')
    stamp(a, 7)
    vX = vAcc
    row = vT[2]; qd = vT[3]; lo = vT[4]
    a(f'v_lshrrev_b32 v{row}, 2, v0')
    a(f'v_and_b32 v{qd}, 3, v0')
    a(f'v_mul_u32_u24 v{lo}, 896, v{row}')
    a(f'v_mul_u32_u24 v{qd}, 224, v{qd}')
    a(f'v_add_u32 v{lo}, v{lo}, v{qd}')
    for j in range(14):
        a(f'ds_read_b128 {vr(vX+4*j,4)}, v{lo} offset:{16*j}')
    G1, G2, rr, cc = vE+16, vE+17, vE+18, vE+19
    pa = vE + 20
    a(f'v_bfe_u32 v{G1}, v{vLane}, 4, 1')
    a(f'v_lshrrev_b32 v{G2}, 5, v{vLane}')
    a(f'v_bfe_u32 v{rr}, v{vLane}, 2, 2')
    a(f'v_and_b32 v{cc}, 3, v{vLane}')
    a(f'v_lshl_add_u32 v{rr}, v{G2}, 2, v{rr}')
    a(f'v_mul_u32_u24 v{pa}, 56, v{rr}')
    a(f'v_lshl_add_u32 v{cc}, v{G1}, 2, v{cc}')
    a(f'v_lshl_add_u32 v{pa}, v{cc}, 3, v{pa}')
    a('s_lshr_b32 s40, s23, 1')
    a('s_mul_i32 s40, s40, 3136')
    a(f's_add_u32 s40, s40, {K1_W + 2*K1_WB}')
    a(f'v_add_u32 v{pa}, s40, v{pa}')
    for ah in range(2):
        for ks in range(2):
            for half in range(2):
                a(f'ds_read_b64_tr_b16 {vr(vPhi+ah*8+ks*4+2*half,2)}, v{pa} offset:{ah*1568 + (16*ks+8*half)*56}')
    def U(i):
        return (vFr + i) if i < 40 else ((vE + 24 + i - 40) if i < 64 else (vU + i - 64))
    sm2 = vE+8; sq2 = vE+10; t0 = vE+12; t1 = vE+13; sm = vE+14; sq = vE+15
    for j in range(56):
        if j % 4 == 0:
            a(f's_waitcnt lgkmcnt({min(15, 8 + 13 - j//4)})')
        a(f'v_lshlrev_b32 v{U(2*j)}, 16, v{vX+j}')
        a(f'v_and_b32 v{U(2*j+1)}, 0xffff0000, v{vX+j}')
        if j == 0:
            a(f'v_pk_mul_f32 {vr(sq2,2)}, {vr(U(0),2)}, {vr(U(0),2)}')
            a(f'v_mov_b32 v{sm2}, v{U(0)}')
            a(f'v_mov_b32 v{sm2+1}, v{U(1)}')
        else:
            a(f'v_pk_fma_f32 {vr(sq2,2)}, {vr(U(2*j),2)}, {vr(U(2*j),2)}, {vr(sq2,2)}')
            a(f'v_pk_add_f32 {vr(sm2,2)}, {vr(sm2,2)}, {vr(U(2*j),2)}')
    a(f'v_add_f32 v{sm}, v{sm2}, v{sm2+1}')
    a(f'v_add_f32 v{sq}, v{sq2}, v{sq2+1}')
    a('s_nop 1')
    for perm in ('[1,0,3,2]', '[2,3,0,1]'):
        a(f'v_add_f32_dpp v{t0}, v{sm}, v{sm} quad_perm:{perm} row_mask:0xf bank_mask:0xf')
        a(f'v_add_f32_dpp v{t1}, v{sq}, v{sq} quad_perm:{perm} row_mask:0xf bank_mask:0xf')
        a(f'v_mov_b32 v{sm}, v{t0}')
        a(f'v_mov_b32 v{sq}, v{t1}')
        a('s_nop 1')
    ln_finish(a, sm, sq, 448.0)
    rr2 = vE+8; nm2 = vE+10
    a(f'v_mov_b32 v{rr2}, v{sq}')
    a(f'v_mov_b32 v{rr2+1}, v{sq}')
    a(f'v_sub_f32 v{nm2}, 0, v{sm}')
    a(f'v_sub_f32 v{nm2+1}, 0, v{sm}')
    for j in range(56):
        a(f'v_pk_fma_f32 {vr(U(2*j),2)}, {vr(U(2*j),2)}, {vr(rr2,2)}, {vr(nm2,2)}')
        a(f'v_cvt_pk_bf16_f32 v{vX+j}, v{U(2*j)}, v{U(2*j+1)}')
        if j % 4 == 3:
            a(f'ds_write_b128 v{lo}, {vr(vX+j-3,4)} offset:{4*(j-3)}')
    for i in range(64):
        a(f'v_mov_b32 v{vAcc+i}, 0')
    a('s_waitcnt lgkmcnt(0)')
    a('s_barrier')
    stamp(a, 1)

    LZ = 'k1_zpath'
    a('s_cmp_ge_u32 s21, 6')
    a(f's_cbranch_scc1 {LZ}')

    def mainloop(kind):
        if kind == 'h':
            a('s_lshr_b32 s40, s23, 1')
            a('s_mul_i32 s40, s40, 112')
            a('s_and_b32 s41, s23, 1')
            a(f's_mul_i32 s41, s41, {64*896}')
            nA, nB = 2, 2
            aoff = [0, 56]; boff = [0, 32*896]
        else:
            a('s_lshr_b32 s40, s23, 2')
            a('s_mul_i32 s40, s40, 256')
            a('s_and_b32 s41, s23, 3')
            a(f's_mul_i32 s41, s41, {32*896}')
            nA, nB = 4, 1
            aoff = [0, 64, 128, 192]; boff = [0]
        va = vT[5]
        a(f'v_add_u32 v{va}, s40, v{vAad}')
        for m in range(4):
            a(f'v_add_u32 v{vBad[m]}, s41, v{vBad[m]}')
        NBLK = 14
        for blk in range(NBLK):
            if blk + 2 < NBLK:
                w_dma(blk + 2)
            for ks in range(2):
                fb = vFr + ks*20
                for i in range(nA):
                    for half in range(2):
                        off = (blk % 3)*K1_WB + (16*ks + 4*half)*448 + aoff[i]
                        a(f'ds_read_b64_tr_b16 {vr(fb+4*i+2*half,2)}, v{va} offset:{off}')
                for i in range(nB):
                    off = boff[i] + (blk >> 1)*128
                    a(f'ds_read_b128 {vr(fb+4*(nA+i),4)}, v{vBad[2*(blk&1)+ks]} offset:{off}')
            nrd = 2*nA + nB
            for ks in range(2):
                a(f's_waitcnt lgkmcnt({nrd if ks == 0 else 0})')
                fb = vFr + ks*20
                for i in range(nA):
                    for jb in range(nB):
                        t = i*nB + jb
                        a(f'v_mfma_f32_32x32x16_bf16 {vr(vAcc+16*t,16)}, {vr(fb+4*i,4)}, {vr(fb+4*(nA+jb),4)}, {vr(vAcc+16*t,16)}')
            if blk + 1 < NBLK:
                a(f's_waitcnt vmcnt({2 if blk + 2 < NBLK else 0})')
                a('s_barrier')
        stamp(a, 2)
        srd(a, 56, 54, 55, S*S*2)
        a('s_and_b32 s38, s2, 7')
        a('s_lshl_b32 s38, s38, 20')
        a('s_lshr_b32 s49, s2, 3')
        a('s_lshl_b32 s49, s49, 13')
        a('s_add_u32 s38, s38, s49')
        for m in range(5):
            a(f'buffer_load_dwordx4 {vr(vU+44,4)}, v{vT[1]}, s[56:59], s38 offen')
            a(f's_add_u32 s38, s38, {14336*16}')
        a('s_barrier')

    ERS = 272
    mainloop('h')
    a('s_and_b32 s39, s21, 1')
    a('s_lshl_b32 s39, s39, 3')
    a('s_lshr_b32 s40, s23, 1')
    a('s_lshl_b32 s40, s40, 1')
    a('s_add_u32 s39, s39, s40')
    a('s_mov_b32 s42, 0')
    a('s_mov_b32 s43, -1')
    tl = vT[0]; hh = vT[1]; wa = vT[2]; ra = vT[3]; ga = vT[4]
    a(f'v_and_b32 v{tl}, 31, v{vLane}')
    a(f'v_lshrrev_b32 v{hh}, 5, v{vLane}')
    a(f's_mul_i32 s45, s23, {64*ERS}')
    a(f'v_mul_u32_u24 v{wa}, {ERS}, v{tl}')
    a(f'v_lshl_add_u32 v{wa}, v{hh}, 3, v{wa}')
    a(f'v_add_u32 v{wa}, s45, v{wa}')
    a('s_lshl_b32 s40, s20, 7')
    a('s_and_b32 s41, s23, 1')
    a('s_lshl_b32 s41, s41, 6')
    a('s_add_u32 s40, s40, s41')
    LV = 'k1_vpath'
    a('s_cmp_ge_u32 s21, 4')
    a(f's_cbranch_scc1 {LV}')
    P = vE; p = vE + 8
    mx = vE + 24; mn = vE + 25; u0 = vE + 26; u1 = vE + 27; sp = vE + 28; sn = vE + 29
    en = vFr; ep = vFr + 16; T2 = vE + 32
    mx2 = vU; mn2 = vU + 2; sp2 = vU + 4; sn2 = vU + 6
    a(f's_mov_b32 s44, {f2u(L2E)}')
    a(f's_mov_b32 s45, {f2u(L2E)}')
    a(f's_mov_b32 s46, {f2u(-L2E)}')
    a(f's_mov_b32 s47, {f2u(-L2E)}')
    a(f's_mul_i32 s53, s23, {64*ERS}')
    for ah in range(2):
        for b in range(2):
            acc = vAcc + 16*(ah*2+b)
            for j in range(8):
                a(f'v_cvt_pk_bf16_f32 v{P+j}, v{acc+2*j}, v{acc+2*j+1}')
            a(f'v_cndmask_b32 v{P+6}, v{P+6}, 0, s[42:43]')
            a(f'v_cndmask_b32 v{P+7}, v{P+7}, 0, s[42:43]')
            a('s_nop 1')
            a(f'v_mfma_f32_32x32x16_bf16 {vr(T2,16)}, {vr(vPhi+ah*8,4)}, {vr(P,4)}, 0')
            a(f'v_mfma_f32_32x32x16_bf16 {vr(T2,16)}, {vr(vPhi+ah*8+4,4)}, {vr(P+4,4)}, {vr(T2,16)}')
            a.nop(12)
            for j in range(8):
                a(f'v_cvt_pk_bf16_f32 v{u0}, v{T2+2*j}, v{T2+2*j+1}')
                a(f'v_lshlrev_b32 v{p+2*j}, 16, v{u0}')
                a(f'v_and_b32 v{p+2*j+1}, 0xffff0000, v{u0}')
            for j in range(12, 16):
                a(f'v_cndmask_b32 v{p+j}, v{p+j}, v{p+11}, s[42:43]')
            a(f'v_max3_f32 v{mx}, v{p}, v{p+1}, v{p+2}')
            a(f'v_min3_f32 v{mn}, v{p}, v{p+1}, v{p+2}')
            for j in range(3, 15, 2):
                a(f'v_max3_f32 v{mx}, v{mx}, v{p+j}, v{p+j+1}')
                a(f'v_min3_f32 v{mn}, v{mn}, v{p+j}, v{p+j+1}')
            a(f'v_max_f32 v{mx}, v{mx}, v{p+15}')
            a(f'v_min_f32 v{mn}, v{mn}, v{p+15}')
            xhalf(a, mx, u0, u1, 'v_max_f32', mx)
            xhalf(a, mn, u0, u1, 'v_min_f32', mn)
            a(f'v_mul_f32 v{mx2}, s44, v{mx}')
            a(f'v_mul_f32 v{mn2}, s44, v{mn}')
            a(f'v_sub_f32 v{mx2}, 0, v{mx2}')
            for j in range(0, 16, 2):
                a(f'v_pk_fma_f32 {vr(ep+j,2)}, {vr(p+j,2)}, s[44:45], {vr(mx2,2)} op_sel_hi:[1,1,0]')
                a(f'v_pk_fma_f32 {vr(en+j,2)}, {vr(p+j,2)}, s[46:47], {vr(mn2,2)} op_sel_hi:[1,1,0]')
            for j in range(16):
                a(f'v_exp_f32 v{ep+j}, v{ep+j}')
                a(f'v_exp_f32 v{en+j}, v{en+j}')
            a('s_nop 0')
            for j in range(12, 16):
                a(f'v_cndmask_b32 v{ep+j}, v{ep+j}, 0, s[42:43]')
                a(f'v_cndmask_b32 v{en+j}, v{en+j}, 0, s[42:43]')
            a(f'v_pk_add_f32 {vr(sp2,2)}, {vr(ep,2)}, {vr(ep+2,2)}')
            a(f'v_pk_add_f32 {vr(sn2,2)}, {vr(en,2)}, {vr(en+2,2)}')
            for j in range(4, 16, 2):
                a(f'v_pk_add_f32 {vr(sp2,2)}, {vr(sp2,2)}, {vr(ep+j,2)}')
                a(f'v_pk_add_f32 {vr(sn2,2)}, {vr(sn2,2)}, {vr(en+j,2)}')
            a(f'v_add_f32 v{sp}, v{sp2}, v{sp2+1}')
            a(f'v_add_f32 v{sn}, v{sn2}, v{sn2+1}')
            xhalf(a, sp, u0, u1, 'v_add_f32', sp)
            xhalf(a, sn, u0, u1, 'v_add_f32', sn)
            a(f'v_rcp_f32 v{sp2}, v{sp}')
            a(f'v_rcp_f32 v{sn2}, v{sn}')
            a('s_nop 0')
            for j in range(0, 16, 2):
                a(f'v_pk_mul_f32 {vr(ep+j,2)}, {vr(ep+j,2)}, {vr(sp2,2)} op_sel_hi:[1,0]')
                a(f'v_pk_mul_f32 {vr(en+j,2)}, {vr(en+j,2)}, {vr(sn2,2)} op_sel_hi:[1,0]')
            for j in range(8):
                a(f'v_cvt_pk_bf16_f32 v{ep+j}, v{ep+2*j}, v{ep+2*j+1}')
                a(f'v_cvt_pk_bf16_f32 v{en+j}, v{en+2*j}, v{en+2*j+1}')
            for q in range(4):
                for neg, src in ((0, ep), (1, en)):
                    a(f'ds_write_b64 v{wa}, {vr(src+2*q,2)} offset:{b*32*ERS + ah*128 + q*16 + neg*64}')
    LKS = 'k1_kst'
    a('s_cmp_ge_u32 s21, 2')
    a(f's_cbranch_scc1 {LKS}')
    a(f'v_mul_u32_u24 v{ra}, {ERS}, v{tl}')
    a(f'v_lshl_add_u32 v{ra}, v{hh}, 4, v{ra}')
    a(f'v_add_u32 v{ra}, s53, v{ra}')
    a(f'v_lshlrev_b32 v{ga}, 4, v{vLane}')
    a('s_lshl_b32 s46, s40, 11')
    a('s_lshl_b32 s47, s39, 12')
    a('s_add_u32 s46, s46, s47')
    a('s_waitcnt lgkmcnt(0)')
    idx = [(tt, ah, ks) for tt in range(2) for ah in range(2) for ks in range(4)]
    for i, (tt, ah, ks) in enumerate(idx):
        a(f'ds_read_b128 {vr(vAcc+4*i,4)}, v{ra} offset:{tt*32*ERS + ah*128 + ks*32}')
    for i, (tt, ah, ks) in enumerate(idx):
        a(f's_waitcnt lgkmcnt({15-i})')
        a(f's_add_u32 s47, s46, {WS_PHIQ + tt*65536 + ah*4096 + ks*1024}')
        a(f'buffer_store_dwordx4 {vr(vAcc+4*i,4)}, v{ga}, s[16:19], s47 offen')
    a(f's_branch {END}')
    a.lab(LKS)
    a(f'v_lshrrev_b32 v{vT[5]}, 4, v{vLane}')
    a(f'v_and_b32 v{vT[6]}, 15, v{vLane}')
    a(f'v_mul_u32_u24 v{ra}, {ERS}, v{vT[5]}')
    a(f'v_lshl_add_u32 v{ra}, v{vT[6]}, 4, v{ra}')
    a(f'v_add_u32 v{ra}, s53, v{ra}')
    a(f'v_lshlrev_b32 v{ga}, 11, v{vT[5]}')
    a(f'v_lshl_add_u32 v{ga}, v{vT[6]}, 4, v{ga}')
    a('s_lshl_b32 s46, s40, 11')
    a('s_lshl_b32 s47, s39, 7')
    a('s_add_u32 s46, s46, s47')
    a(f's_add_u32 s46, s46, {WS_PHIK}')
    a('s_waitcnt lgkmcnt(0)')
    for i in range(16):
        a(f'ds_read_b128 {vr(vAcc+4*i,4)}, v{ra} offset:{4*i*ERS}')
    for i in range(16):
        a(f's_waitcnt lgkmcnt({15-i})')
        a(f'buffer_store_dwordx4 {vr(vAcc+4*i,4)}, v{ga}, s[16:19], s46 offen')
        a('s_add_u32 s46, s46, 8192')
    a(f's_branch {END}')
    a.lab(LV)
    for ah in range(2):
        for b in range(2):
            acc = vAcc + 16*(ah*2+b)
            for j in range(8):
                a(f'v_cvt_pk_bf16_f32 v{vE+j}, v{acc+2*j}, v{acc+2*j+1}')
            for q in range(4):
                if q == 3:
                    a('s_mov_b64 exec, 0xffffffff')
                a(f'ds_write_b64 v{wa}, {vr(vE+2*q,2)} offset:{b*32*ERS + ah*56 + q*16}')
                if q == 3:
                    a('s_mov_b64 exec, -1')
    a(f'v_lshrrev_b32 v{vT[5]}, 3, v{vLane}')
    a(f'v_and_b32 v{vT[6]}, 7, v{vLane}')
    a(f'v_mul_u32_u24 v{ra}, {ERS}, v{vT[5]}')
    a(f'v_lshl_add_u32 v{ra}, v{vT[6]}, 4, v{ra}')
    a(f'v_add_u32 v{ra}, s45, v{ra}')
    a(f'v_mul_u32_u24 v{ga}, 896, v{vT[5]}')
    a(f'v_lshl_add_u32 v{ga}, v{vT[6]}, 4, v{ga}')
    a('s_mul_i32 s46, s40, 896')
    a('s_mul_i32 s47, s39, 56')
    a('s_add_u32 s46, s46, s47')
    a(f's_add_u32 s46, s46, {WS_V}')
    a(f'v_cmp_gt_u32 vcc, 7, v{vT[6]}')
    a('s_waitcnt lgkmcnt(0)')
    for i in range(8):
        a(f'ds_read_b128 {vr(vAcc+4*i,4)}, v{ra} offset:{8*i*ERS}')
    a('s_and_saveexec_b64 s[50:51], vcc')
    for i in range(8):
        a(f's_waitcnt lgkmcnt({7-i})')
        a(f'buffer_store_dwordx4 {vr(vAcc+4*i,4)}, v{ga}, s[16:19], s46 offen')
        a(f's_add_u32 s46, s46, {8*896}')
    a(f's_branch {END}')

    a.lab(LZ)
    mainloop('z')
    tl = vT[0]; hh = vT[1]; wa = vT[2]; ra = vT[3]; ga = vT[4]; staddr = vT[7]
    a(f'v_and_b32 v{tl}, 31, v{vLane}')
    a(f'v_lshrrev_b32 v{hh}, 5, v{vLane}')
    a(f's_mul_i32 s49, s23, {32*ERS}')
    a(f'v_mul_u32_u24 v{wa}, {ERS}, v{tl}')
    a(f'v_lshl_add_u32 v{wa}, v{hh}, 3, v{wa}')
    a(f'v_add_u32 v{wa}, s49, v{wa}')
    a('s_lshl_b32 s40, s20, 7')
    a('s_and_b32 s41, s23, 3')
    a('s_lshl_b32 s41, s41, 5')
    a('s_add_u32 s40, s40, s41')
    a(f'v_add_u32 v{tl}, s40, v{tl}')
    a('s_sub_u32 s41, s21, 6')
    a('s_and_b32 s45, s41, 3')
    a('s_mul_i32 s45, s45, 448')
    a('s_lshr_b32 s46, s23, 2')
    a('s_lshl_b32 s46, s46, 8')
    a('s_add_u32 s45, s45, s46')
    a('s_cmp_ge_u32 s41, 4')
    a(f's_mov_b32 s46, {WS_Z2}')
    a(f's_cselect_b32 s46, s46, {WS_Z1}')
    a('s_add_u32 s45, s45, s46')
    a('s_mul_i32 s46, s40, 1792')
    a('s_add_u32 s45, s45, s46')
    a('s_and_b32 s46, s41, 3')
    a('s_lshl_b32 s46, s46, 1')
    a('s_lshr_b32 s47, s23, 2')
    a('s_add_u32 s46, s46, s47')
    a('s_lshl_b32 s46, s46, 14')
    a(f's_add_u32 s46, s46, {WS_ST}')
    a(f'v_lshlrev_b32 v{staddr}, 2, v{tl}')
    a(f's_mov_b32 s44, {f2u(GELU_K)}')
    a(f's_mov_b32 s47, {f2u(0.044715)}')
    sm = vE + 40; sq = vE + 41; u0 = vE + 42; u1 = vE + 43
    gk = vU
    a(f'v_mov_b32 v{gk}, {f2u(GELU_K*0.044715)}')
    a(f'v_mov_b32 v{gk+1}, {f2u(GELU_K*0.044715)}')
    a(f'v_mov_b32 v{gk+2}, {f2u(GELU_K)}')
    a(f'v_mov_b32 v{gk+3}, {f2u(GELU_K)}')
    a(f'v_mov_b32 v{gk+4}, 1.0')
    a(f'v_mov_b32 v{gk+5}, 1.0')
    a(f'v_mov_b32 v{sm}, 0')
    a(f'v_mov_b32 v{sq}, 0')
    for t in range(4):
        lskip = a.newlab('k1zs')
        if t == 3:
            a('s_cmp_ge_u32 s23, 4')
            a(f's_cbranch_scc1 {lskip}')
        acc = vAcc + 16*t
        xs = vE; w = vE + 16
        for j in range(8):
            a(f'v_cvt_pk_bf16_f32 v{u0}, v{acc+2*j}, v{acc+2*j+1}')
            a(f'v_lshlrev_b32 v{xs+2*j}, 16, v{u0}')
            a(f'v_and_b32 v{xs+2*j+1}, 0xffff0000, v{u0}')
        for j in range(0, 16, 2):
            a(f'v_pk_mul_f32 {vr(w+j,2)}, {vr(xs+j,2)}, {vr(xs+j,2)}')
            a(f'v_pk_fma_f32 {vr(w+j,2)}, {vr(w+j,2)}, {vr(gk,2)}, {vr(gk+2,2)}')
            a(f'v_pk_mul_f32 {vr(w+j,2)}, {vr(w+j,2)}, {vr(xs+j,2)}')
        for j in range(16):
            a(f'v_exp_f32 v{w+j}, v{w+j}')
        a('s_nop 0')
        for j in range(0, 16, 2):
            a(f'v_pk_add_f32 {vr(w+j,2)}, {vr(w+j,2)}, {vr(gk+4,2)}')
        for j in range(16):
            a(f'v_rcp_f32 v{w+j}, v{w+j}')
        a('s_nop 0')
        for j in range(0, 16, 2):
            a(f'v_pk_mul_f32 {vr(w+j,2)}, {vr(w+j,2)}, {vr(xs+j,2)}')
        for j in range(8):
            a(f'v_cvt_pk_bf16_f32 v{xs+j}, v{w+2*j}, v{w+2*j+1}')
        for q in range(4):
            a(f'ds_write_b64 v{wa}, {vr(xs+2*q,2)} offset:{t*64+q*16}')
        for j in range(8):
            a(f'v_dot2c_f32_bf16 v{sq}, v{xs+j}, v{xs+j}')
            a(f'v_lshlrev_b32 v{u0}, 16, v{xs+j}')
            a(f'v_and_b32 v{u1}, 0xffff0000, v{xs+j}')
            a(f'v_add_f32 v{sm}, v{sm}, v{u0}')
            a(f'v_add_f32 v{sm}, v{sm}, v{u1}')
        if t == 3:
            a.lab(lskip)
    a(f'v_lshrrev_b32 v{vT[5]}, 4, v{vLane}')
    a(f'v_and_b32 v{vT[6]}, 15, v{vLane}')
    a(f'v_mul_u32_u24 v{ra}, {ERS}, v{vT[5]}')
    a(f'v_lshl_add_u32 v{ra}, v{vT[6]}, 4, v{ra}')
    a(f'v_add_u32 v{ra}, s49, v{ra}')
    a(f'v_mul_u32_u24 v{ga}, 1792, v{vT[5]}')
    a(f'v_lshl_add_u32 v{ga}, v{vT[6]}, 4, v{ga}')
    a('s_cmp_ge_u32 s23, 4')
    a('s_cselect_b32 s52, 12, 16')
    a(f'v_cmp_gt_u32 vcc, s52, v{vT[6]}')
    a('s_waitcnt lgkmcnt(0)')
    for i in range(8):
        a(f'ds_read_b128 {vr(vAcc+4*i,4)}, v{ra} offset:{4*i*ERS}')
    a('s_and_saveexec_b64 s[50:51], vcc')
    for i in range(8):
        a(f's_waitcnt lgkmcnt({7-i})')
        a(f'buffer_store_dwordx4 {vr(vAcc+4*i,4)}, v{ga}, s[16:19], s45 offen')
        a(f's_add_u32 s45, s45, {4*1792}')
    a('s_mov_b64 exec, -1')
    a('s_cmp_lt_u32 s41, 4')
    a(f's_cbranch_scc1 {END}')
    xhalf(a, sm, u0, u1, 'v_add_f32', sm)
    xhalf(a, sq, u0, u1, 'v_add_f32', sq)
    a('s_mov_b64 exec, 0xffffffff')
    a(f'buffer_store_dword v{sm}, v{staddr}, s[16:19], s46 offen')
    a(f's_add_u32 s46, s46, 8192')
    a(f'buffer_store_dword v{sq}, v{staddr}, s[16:19], s46 offen')
    a.lab(END)
    a('s_mov_b64 exec, -1')
    stamp(a, 3)
    stamp_flush(a, 8, 0, vE)
    a.lab(END + '_x')
    a('s_endpgm')
    return name, R.hi, K1_LDS

def gen_k2(a):
    name = 'k2_mix_kernel'
    header(a, name)
    END = 'k2_end'; KV = 'k2_kv'
    A_RS = 192
    A_BUF = 64*A_RS; B_BUF = 16384
    L_A = 16384
    L_B = L_A + 3*A_BUF
    SLAB = 128*272
    LDS = max(L_B + 4*B_BUF, 4*SLAB, 8*16384)
    NBLK = 32
    a('s_cmp_ge_u32 s2, 240')
    a(f's_cbranch_scc1 {END}_x')
    a('s_load_dwordx4 s[24:27], s[0:1], 48')
    a('s_load_dwordx2 s[32:33], s[0:1], 88')
    a('s_load_dwordx2 s[54:55], s[0:1], 24')
    a('s_load_dwordx2 s[56:57], s[0:1], 64')
    stamp(a, 0); stamp(a, 1); stamp(a, 2)
    R = Regs(1)
    vLane = R.alloc()
    vT = [R.alloc() for _ in range(10)]
    vAg = R.alloc(); vAl = R.alloc(); vSt = R.alloc()
    vBg = [R.alloc(), R.alloc()]
    vAad = R.alloc(); vBad = R.alloc()
    vStg = [R.alloc(4, 4) for _ in range(4)]
    vMR = [R.alloc(2, 2) for _ in range(2)]
    vAcc = R.alloc(64, 4)
    vFr = [R.alloc(16, 4), R.alloc(16, 4)]
    vE = R.alloc(40, 4)
    a(f'v_and_b32 v{vLane}, 63, v0')
    a(f'v_lshrrev_b32 v{vT[0]}, 6, v0')
    a('s_nop 0')
    a(f'v_readfirstlane_b32 s23, v{vT[0]}')
    a('s_and_b32 s20, s2, 7')
    a('s_lshl_b32 s20, s20, 1')
    a('s_lshr_b32 s21, s2, 3')
    a('s_and_b32 s34, s21, 1')
    a('s_add_u32 s20, s20, s34')
    a('s_lshr_b32 s21, s2, 4')
    sl = vT[0]; c = vT[1]
    a(f'v_lshrrev_b32 v{sl}, 3, v0')
    a(f'v_and_b32 v{c}, 7, v0')
    a(f'v_lshlrev_b32 v{c}, 4, v{c}')
    a(f'v_mul_u32_u24 v{vAg}, 1792, v{sl}')
    a(f'v_add_u32 v{vAg}, v{vAg}, v{c}')
    a('s_lshl_b32 s34, s21, 7')
    a(f's_add_u32 s34, s34, {WS_Z2}')
    a(f'v_add_u32 v{vAg}, s34, v{vAg}')
    a(f'v_mul_u32_u24 v{vAl}, {A_RS}, v{sl}')
    a(f'v_add_u32 v{vAl}, v{vAl}, v{c}')
    a(f'v_add_u32 v{vAl}, {L_A}, v{vAl}')
    a(f'v_lshlrev_b32 v{vSt}, 3, v{sl}')
    a('s_lshl_b32 s34, s20, 19')
    a('s_lshl_b32 s35, s23, 16')
    a('s_add_u32 s34, s34, s35')
    a(f'v_lshrrev_b32 v{vT[2]}, 3, v{vLane}')
    a(f'v_lshrrev_b32 v{vT[3]}, 4, v{vLane}')
    a(f'v_and_b32 v{vT[4]}, 7, v{vLane}')
    for j in range(2):
        a(f'v_add_u32 v{vT[5]}, {4*j}, v{vT[3]}')
        a(f'v_and_b32 v{vT[5]}, 7, v{vT[5]}')
        a(f'v_xor_b32 v{vT[5]}, v{vT[5]}, v{vT[4]}')
        a(f'v_add_u32 v{vT[6]}, {8*j}, v{vT[2]}')
        a(f'v_lshlrev_b32 v{vBg[j]}, 12, v{vT[6]}')
        a(f'v_lshl_add_u32 v{vBg[j]}, v{vT[5]}, 4, v{vBg[j]}')
        a(f'v_add_u32 v{vBg[j]}, s34, v{vBg[j]}')
    a('s_lshl_b32 s35, s23, 11')
    a(f's_add_u32 s35, s35, {L_B}')
    a(f'v_lshlrev_b32 v{vT[2]}, 4, v0')
    a('s_waitcnt lgkmcnt(0)')
    srd(a, 4, 24, 25, S*S*2)
    srd(a, 8, 26, 27, S*2)
    srd(a, 16, 32, 33, WS_SIZE)
    a('s_cmp_ge_u32 s2, 224')
    a(f's_cbranch_scc1 {KV}')
    sbuf = vAcc
    for j in range(16):
        a(f's_mov_b32 s38, {WS_ST + j*8192}')
        a(f'buffer_load_dwordx4 {vr(sbuf+4*j,4)}, v{vT[2]}, s[16:19], s38 offen')
    def issue(blk):
        a(f's_mov_b32 s36, {blk*64*1792}')
        a(f's_mov_b32 s37, {blk*128}')
        a(f'buffer_load_dwordx4 {vr(vStg[blk%4],4)}, v{vAg}, s[16:19], s36 offen')
        for j in range(2):
            a(f's_add_u32 m0, s35, {(blk%4)*B_BUF + j*1024}')
            a('s_nop 0')
            a(f'buffer_load_dwordx4 v{vBg[j]}, s[4:7], s37 offen lds')
    for b in range(4):
        issue(b)
    tr_addr(a, vAad, vLane, A_RS, vT[3:7])
    a('s_lshr_b32 s40, s23, 1')
    a(f's_mul_i32 s41, s40, {16*A_RS}')
    a(f's_add_u32 s41, s41, {L_A}')
    a(f'v_add_u32 v{vAad}, s41, v{vAad}')
    a(f'v_and_b32 v{vT[3]}, 31, v{vLane}')
    a(f'v_lshrrev_b32 v{vT[4]}, 5, v{vLane}')
    a('s_lshl_b32 s41, s40, 1')
    a(f'v_add_u32 v{vT[4]}, s41, v{vT[4]}')
    a(f'v_bfe_u32 v{vT[5]}, v{vT[3]}, 1, 3')
    a(f'v_xor_b32 v{vT[4]}, v{vT[4]}, v{vT[5]}')
    a(f'v_lshlrev_b32 v{vBad}, 7, v{vT[3]}')
    a(f'v_lshl_add_u32 v{vBad}, v{vT[4]}, 4, v{vBad}')
    a('s_and_b32 s41, s23, 1')
    a('s_lshl_b32 s41, s41, 13')
    a(f's_add_u32 s41, s41, {L_B}')
    a(f'v_add_u32 v{vBad}, s41, v{vBad}')
    a('s_waitcnt vmcnt(12)')
    for tk in range(4):
        sm = vE + 2*tk + 1; sq = vE + 2*tk
        a(f'v_add_f32 v{sm}, v{sbuf+tk}, v{sbuf+8+tk}')
        a(f'v_add_f32 v{sq}, v{sbuf+4+tk}, v{sbuf+12+tk}')
        for j in range(2, 8):
            a(f'v_add_f32 v{sm}, v{sm}, v{sbuf+8*j+tk}')
            a(f'v_add_f32 v{sq}, v{sq}, v{sbuf+8*j+4+tk}')
        ln_finish(a, sm, sq, 896.0)
    a(f'v_lshlrev_b32 v{vT[3]}, 5, v0')
    a(f'ds_write_b128 v{vT[3]}, {vr(vE,4)}')
    a(f'ds_write_b128 v{vT[3]}, {vr(vE+4,4)} offset:16')
    for i in range(64):
        a(f'v_mov_b32 v{vAcc+i}, 0')
    a('s_waitcnt lgkmcnt(0)')
    a('s_barrier')

    def transform(blk, j0, j1):
        x = vStg[blk % 4]; mr = vMR[blk % 2]
        t0 = vT[5]; t1 = vT[6]
        for j in range(j0, j1):
            a(f'v_lshlrev_b32 v{t0}, 16, v{x+j}')
            a(f'v_and_b32 v{t1}, 0xffff0000, v{x+j}')
            a(f'v_fma_f32 v{t0}, v{t0}, v{mr}, -v{mr+1}')
            a(f'v_fma_f32 v{t1}, v{t1}, v{mr}, -v{mr+1}')
            a(f'v_cvt_pk_bf16_f32 v{x+j}, v{t0}, v{t1}')
    def awrite(blk):
        a(f'ds_write_b128 v{vAl}, {vr(vStg[blk%4],4)} offset:{(blk%3)*A_BUF}')
    def mr_read(blk):
        a(f'ds_read_b64 {vr(vMR[blk%2],2)}, v{vSt} offset:{512*blk}')
    def frag_read(blk):
        F = vFr[blk % 2]
        for i in range(2):
            for half in range(2):
                a(f'ds_read_b64_tr_b16 {vr(F+4*i+2*half,2)}, v{vAad} offset:{(blk%3)*A_BUF + 4*half*A_RS + 64*i}')
        for i in range(2):
            a(f'ds_read_b128 {vr(F+8+4*i,4)}, v{vBad} offset:{(blk%4)*B_BUF + 4096*i}')

    mr_read(0); mr_read(1)
    a('s_waitcnt vmcnt(6) lgkmcnt(0)')
    transform(0, 0, 4); awrite(0)
    transform(1, 0, 4); awrite(1)
    mr_read(2)
    a('s_waitcnt lgkmcnt(0)')
    a('s_barrier')
    frag_read(0)
    stamp(a, 1)
    for i in range(NBLK):
        F = vFr[i % 2]
        if i + 4 < NBLK:
            issue(i + 4)
        if i + 1 < NBLK:
            a('s_waitcnt lgkmcnt(0)')
            frag_read(i + 1)
        else:
            a('s_waitcnt lgkmcnt(0)')
        nout = 3 * sum(1 for b in (i+3, i+4) if b < NBLK)
        def mf(t):
            ii, jb = t // 2, t % 2
            a(f'v_mfma_f32_32x32x16_bf16 {vr(vAcc+16*t,16)}, {vr(F+4*ii,4)}, {vr(F+8+4*jb,4)}, {vr(vAcc+16*t,16)}')
        mf(0)
        if i + 2 < NBLK:
            a(f's_waitcnt vmcnt({nout})')
            transform(i + 2, 0, 2)
        mf(1)
        if i + 2 < NBLK:
            transform(i + 2, 2, 4)
        mf(2)
        if i + 2 < NBLK:
            awrite(i + 2)
            if i + 3 < NBLK:
                mr_read(i + 3)
        mf(3)
        if i + 1 < NBLK:
            a('s_waitcnt lgkmcnt(0)')
            a('s_barrier')
    stamp(a, 2)
    srd(a, 60, 54, 55, D*D*2)
    srd(a, 76, 56, 57, FH*D*2)
    a(f'v_lshlrev_b32 v{vT[9]}, 4, v0')
    a('s_lshr_b32 s38, s2, 3')
    a('s_lshl_b32 s38, s38, 13')
    for m in range(2):
        a(f'buffer_load_dwordx4 {vr(vE+32,4)}, v{vT[9]}, s[60:63], s38 offen')
        a(f's_add_u32 s38, s38, {28*8192}')
    a('s_lshr_b32 s38, s2, 3')
    a('s_lshl_b32 s38, s38, 13')
    for m in range(4):
        a(f'buffer_load_dwordx4 {vr(vE+32,4)}, v{vT[9]}, s[76:79], s38 offen')
        a(f's_add_u32 s38, s38, {28*8192}')
    za = [vT[1], vT[2]]; ba = vT[3]
    a(f'v_lshrrev_b32 v{vT[4]}, 3, v0')
    a(f'v_and_b32 v{vT[5]}, 7, v0')
    a('s_lshl_b32 s40, s20, 7')
    a(f'v_add_u32 v{vT[6]}, s40, v{vT[4]}')
    a(f'v_lshlrev_b32 v{ba}, 1, v{vT[6]}')
    a(f'v_mul_u32_u24 v{za[0]}, 1792, v{vT[6]}')
    a(f'v_lshl_add_u32 v{za[0]}, v{vT[5]}, 4, v{za[0]}')
    a(f'v_add_u32 v{za[1]}, {64*1792}, v{za[0]}')
    a('s_lshl_b32 s41, s21, 7')
    a(f's_add_u32 s42, s41, {WS_Z1}')
    a(f's_add_u32 s43, s41, {WS_U}')
    z1 = vStg[0]; bb = vStg[2]
    for j in range(2):
        a(f'buffer_load_dwordx4 {vr(z1+4*j,4)}, v{za[j]}, s[16:19], s42 offen')
        a(f'buffer_load_ushort v{bb+j}, v{ba}, s[8:11], 0 offen offset:{128*j}')
    wa = vT[7]; ra = vT[8]
    a(f'v_and_b32 v{vT[9]}, 31, v{vLane}')
    a(f'v_mul_u32_u24 v{wa}, 272, v{vT[9]}')
    a(f'v_lshrrev_b32 v{vT[9]}, 5, v{vLane}')
    a(f'v_lshl_add_u32 v{wa}, v{vT[9]}, 4, v{wa}')
    a('s_lshr_b32 s40, s23, 1')
    a(f's_mul_i32 s40, s40, {SLAB}')
    a('s_and_b32 s41, s23, 1')
    a(f's_mul_i32 s41, s41, {64*272}')
    a('s_add_u32 s40, s40, s41')
    a(f'v_add_u32 v{wa}, s40, v{wa}')
    a(f'v_mul_u32_u24 v{ra}, 272, v{vT[4]}')
    a(f'v_lshl_add_u32 v{ra}, v{vT[5]}, 5, v{ra}')
    a('s_barrier')
    for ii in range(2):
        for jb in range(2):
            for q in range(4):
                a(f'ds_write_b128 v{wa}, {vr(vAcc+16*(2*ii+jb)+4*q,4)} offset:{jb*32*272 + (32*ii+8*q)*4}')
    a('s_waitcnt lgkmcnt(0)')
    a('s_barrier')
    for j in range(2):
        for kg in range(4):
            for h2 in range(2):
                off = kg*SLAB + j*64*272 + h2*16
                if off < 65536:
                    a(f'ds_read_b128 {vr(vAcc+32*j+8*kg+4*h2,4)}, v{ra} offset:{off}')
                else:
                    a(f'v_add_u32 v{vT[9]}, {off}, v{ra}')
                    a(f'ds_read_b128 {vr(vAcc+32*j+8*kg+4*h2,4)}, v{vT[9]}')
    a('s_waitcnt vmcnt(0) lgkmcnt(0)')
    t0 = vT[5]; t1 = vT[6]; t2 = vT[9]
    for j in range(2):
        g = vAcc + 32*j
        for kg in range(1, 4):
            for e in range(8):
                a(f'v_add_f32 v{g+e}, v{g+e}, v{g+8*kg+e}')
        a(f'v_lshlrev_b32 v{bb+j}, 16, v{bb+j}')
        for e in range(4):
            a(f'v_cvt_pk_bf16_f32 v{t2}, v{g+2*e}, v{g+2*e+1}')
            a(f'v_lshlrev_b32 v{t0}, 16, v{t2}')
            a(f'v_and_b32 v{t1}, 0xffff0000, v{t2}')
            a(f'v_add_f32 v{t0}, v{t0}, v{bb+j}')
            a(f'v_add_f32 v{t1}, v{t1}, v{bb+j}')
            a(f'v_cvt_pk_bf16_f32 v{t2}, v{t0}, v{t1}')
            a(f'v_lshlrev_b32 v{t0}, 16, v{t2}')
            a(f'v_and_b32 v{t1}, 0xffff0000, v{t2}')
            zz = z1 + 4*j + e
            a(f'v_lshlrev_b32 v{t2}, 16, v{zz}')
            a(f'v_and_b32 v{zz}, 0xffff0000, v{zz}')
            a(f'v_mul_f32 v{t0}, v{t0}, v{t2}')
            a(f'v_mul_f32 v{t1}, v{t1}, v{zz}')
            a(f'v_cvt_pk_bf16_f32 v{zz}, v{t0}, v{t1}')
        a(f'buffer_store_dwordx4 {vr(z1+4*j,4)}, v{za[j]}, s[16:19], s43 offen')
    a(f's_branch {END}')

    a.lab(KV)
    a('s_sub_u32 s20, s2, 224')
    PRS = 192
    vFrK = vFr[0]
    pg = vT[3]; pl = vT[4]; vg = vT[5]; vl = vT[6]
    a(f'v_lshrrev_b32 v{vT[0]}, 3, v{vLane}')
    a(f'v_and_b32 v{vT[1]}, 7, v{vLane}')
    a(f'v_lshlrev_b32 v{pg}, 11, v{vT[0]}')
    a(f'v_lshl_add_u32 v{pg}, v{vT[1]}, 4, v{pg}')
    a(f'v_mul_u32_u24 v{pl}, {PRS}, v{vT[0]}')
    a(f'v_lshl_add_u32 v{pl}, v{vT[1]}, 4, v{pl}')
    a('s_lshl_b32 s40, s23, 14')
    a(f'v_add_u32 v{pl}, s40, v{pl}')
    a(f'v_mul_u32_u24 v{vg}, 896, v{vT[0]}')
    a(f'v_lshl_add_u32 v{vg}, v{vT[1]}, 3, v{vg}')
    a(f'v_lshlrev_b32 v{vl}, 6, v{vT[0]}')
    a(f'v_lshl_add_u32 v{vl}, v{vT[1]}, 3, v{vl}')
    a(f'v_add_u32 v{vl}, s40, v{vl}')
    a(f'v_add_u32 v{vl}, {64*PRS}, v{vl}')
    a(f'v_cmp_eq_u32 s[44:45], 7, v{vT[1]}')
    a('s_lshl_b32 s41, s23, 19')
    a('s_lshl_b32 s42, s20, 7')
    a('s_add_u32 s41, s41, s42')
    a(f's_add_u32 s41, s41, {WS_PHIK}')
    a(f's_mul_i32 s42, s23, {256*896}')
    a('s_mul_i32 s43, s20, 56')
    a('s_add_u32 s42, s42, s43')
    a(f's_add_u32 s42, s42, {WS_V}')
    fa = vT[8]; fb = vT[9]
    tr_addr(a, fb, vLane, PRS, [vE, vE+1, vE+2, vE+3])
    a(f'v_add_u32 v{fb}, s40, v{fb}')
    tr_addr(a, fa, vLane, 64, [vE, vE+1, vE+2, vE+3])
    a(f'v_add_u32 v{fa}, s40, v{fa}')
    a(f'v_add_u32 v{fa}, {64*PRS}, v{fa}')
    for i in range(32):
        a(f'v_mov_b32 v{vAcc+i}, 0')
    one = vE + 36
    a(f'v_mov_b32 v{one}, 0x00003f80')
    pbuf = vAcc + 32
    vbuf = vFr[1]
    def kv_issue(ch):
        for i in range(8):
            a(f's_add_u32 s46, s41, {(ch*64 + 8*i)*2048}')
            a(f'buffer_load_dwordx4 {vr(pbuf+4*i,4)}, v{pg}, s[16:19], s46 offen')
        for i in range(8):
            a(f's_add_u32 s46, s42, {(ch*64 + 8*i)*896}')
            a(f'buffer_load_dwordx2 {vr(vbuf+2*i,2)}, v{vg}, s[16:19], s46 offen')
    kv_issue(0)
    for ch in range(4):
        a('s_waitcnt vmcnt(0)')
        for i in range(8):
            a(f'ds_write_b128 v{pl}, {vr(pbuf+4*i,4)} offset:{8*i*PRS}')
        for i in range(8):
            a(f'v_cndmask_b32 v{vbuf+2*i}, v{vbuf+2*i}, v{one}, s[44:45]')
            a(f'v_cndmask_b32 v{vbuf+2*i+1}, v{vbuf+2*i+1}, 0, s[44:45]')
            a(f'ds_write_b64 v{vl}, {vr(vbuf+2*i,2)} offset:{8*i*64}')
        a('s_waitcnt lgkmcnt(0)')
        if ch < 3:
            kv_issue(ch + 1)
        for ks in range(4):
            for half in range(2):
                a(f'ds_read_b64_tr_b16 {vr(vFrK+2*half,2)}, v{fa} offset:{(16*ks+4*half)*64}')
                a(f'ds_read_b64_tr_b16 {vr(vFrK+4+2*half,2)}, v{fb} offset:{(16*ks+4*half)*PRS}')
                a(f'ds_read_b64_tr_b16 {vr(vFrK+8+2*half,2)}, v{fb} offset:{(16*ks+4*half)*PRS + 64}')
            a('s_waitcnt lgkmcnt(0)')
            a(f'v_mfma_f32_32x32x16_bf16 {vr(vAcc,16)}, {vr(vFrK,4)}, {vr(vFrK+4,4)}, {vr(vAcc,16)}')
            a(f'v_mfma_f32_32x32x16_bf16 {vr(vAcc+16,16)}, {vr(vFrK,4)}, {vr(vFrK+8,4)}, {vr(vAcc+16,16)}')
    a.nop(16)
    a('s_barrier')
    tl = vT[0]; hh = vT[1]; bad = vT[3]
    a(f'v_and_b32 v{tl}, 31, v{vLane}')
    a(f'v_lshrrev_b32 v{hh}, 5, v{vLane}')
    a(f'v_lshlrev_b32 v{bad}, 2, v{tl}')
    a(f'v_lshl_add_u32 v{bad}, v{hh}, 10, v{bad}')
    a('s_lshl_b32 s40, s23, 13')
    a(f'v_add_u32 v{bad}, s40, v{bad}')
    for nt in range(2):
        for q in range(4):
            for i in range(4):
                a(f'ds_write_b32 v{bad}, v{vAcc+16*nt+4*q+i} offset:{(8*q+i)*256 + nt*128}')
    a('s_waitcnt lgkmcnt(0)')
    a('s_barrier')
    a(f'v_lshlrev_b32 v{bad}, 4, v0')
    for w in range(8):
        a(f'ds_read_b128 {vr(vE+4*w,4)}, v{bad} offset:{8192*w}')
    a('s_waitcnt lgkmcnt(0)')
    for w in range(1, 8):
        for j in range(4):
            a(f'v_add_f32 v{vE+j}, v{vE+j}, v{vE+4*w+j}')
    a(f'v_cvt_pk_bf16_f32 v{vE}, v{vE}, v{vE+1}')
    a(f'v_cvt_pk_bf16_f32 v{vE+1}, v{vE+2}, v{vE+3}')
    a(f'v_bfe_u32 v{vT[4]}, v0, 2, 2')
    a(f'v_bfe_u32 v{vT[5]}, v0, 1, 1')
    a(f'v_and_b32 v{vT[6]}, 1, v0')
    a(f'v_lshrrev_b32 v{vT[7]}, 4, v0')
    a(f'v_lshl_add_u32 v{vT[7]}, v{vT[5]}, 5, v{vT[7]}')
    a(f'v_lshlrev_b32 v{bad}, 4, v{vT[7]}')
    a(f'v_lshl_add_u32 v{bad}, v{vT[4]}, 10, v{bad}')
    a(f'v_lshl_add_u32 v{bad}, v{vT[6]}, 3, v{bad}')
    a('s_lshl_b32 s40, s20, 12')
    a(f's_add_u32 s40, s40, {WS_KVT}')
    a(f'buffer_store_dwordx2 {vr(vE,2)}, v{bad}, s[16:19], s40 offen')
    a.lab(END)
    stamp(a, 3)
    stamp_flush(a, 4, 1, vE)
    a.lab(END + '_x')
    a('s_endpgm')
    return name, R.hi, LDS

def gen_k3(a):
    name = 'k3_out_kernel'
    header(a, name)
    END = 'k3_end'
    O_RS = 912
    L_PH = 64*O_RS
    L_W = L_PH + 32768
    SLAB = 64*272
    LDS = L_W + 4*8192
    NB = 21
    a('s_cmp_ge_u32 s2, 224')
    a(f's_cbranch_scc1 {END}_x')
    a('s_load_dwordx2 s[24:25], s[0:1], 0')
    a('s_load_dwordx2 s[26:27], s[0:1], 24')
    a('s_load_dwordx4 s[28:31], s[0:1], 64')
    a('s_load_dwordx2 s[32:33], s[0:1], 88')
    stamp(a, 0)
    R = Regs(1)
    vLane = R.alloc()
    vT = [R.alloc() for _ in range(10)]
    vWg = R.alloc(); vUg = R.alloc()
    vAad = [R.alloc(), R.alloc()]; vBo = R.alloc(); vBu = R.alloc()
    vAcc = R.alloc(32, 4)
    vFr = R.alloc(12, 4)
    vE = R.alloc(96, 4)
    a(f'v_and_b32 v{vLane}, 63, v0')
    a(f'v_lshrrev_b32 v{vT[0]}, 6, v0')
    a('s_nop 0')
    a(f'v_readfirstlane_b32 s23, v{vT[0]}')
    a('s_and_b32 s20, s2, 7')
    a('s_lshl_b32 s20, s20, 2')
    a('s_lshr_b32 s21, s2, 3')
    a('s_and_b32 s34, s21, 3')
    a('s_add_u32 s20, s20, s34')
    a('s_lshr_b32 s21, s2, 5')
    l3 = vT[0]; l4 = vT[1]; l7 = vT[2]
    a(f'v_lshrrev_b32 v{l3}, 3, v{vLane}')
    a(f'v_lshrrev_b32 v{l4}, 4, v{vLane}')
    a(f'v_and_b32 v{l7}, 7, v{vLane}')
    tl = vT[3]; hh = vT[4]; ka = vT[5]
    a(f'v_and_b32 v{tl}, 31, v{vLane}')
    a(f'v_lshrrev_b32 v{hh}, 5, v{vLane}')
    a(f'v_lshlrev_b32 v{ka}, 4, v{vLane}')
    a('s_lshl_b32 s41, s20, 17')
    a('s_lshl_b32 s42, s23, 13')
    a('s_add_u32 s41, s41, s42')
    a(f's_add_u32 s41, s41, {WS_PHIQ}')
    a(f's_add_u32 s40, s42, {WS_KVT}')
    a('s_waitcnt lgkmcnt(0)')
    stamp(a, 4)
    srd(a, 16, 32, 33, WS_SIZE)
    for ah in range(2):
        base = vE + 48*ah
        for ks in range(4):
            a(f's_add_u32 s46, s40, {ah*4096 + ks*1024}')
            a(f'buffer_load_dwordx4 {vr(base+4*ks,4)}, v{ka}, s[16:19], s46 offen')
        for tt in range(2):
            for ks in range(4):
                a(f's_add_u32 s46, s41, {tt*65536 + ah*4096 + ks*1024}')
                a(f'buffer_load_dwordx4 {vr(base+16+16*tt+4*ks,4)}, v{ka}, s[16:19], s46 offen')
    srd(a, 4, 24, 25, S*D*2)
    srd(a, 8, 26, 27, D*D*2)
    srd(a, 12, 28, 29, FH*D*2)
    srd(a, 48, 30, 31, S*D*2)
    a(f'v_and_b32 v{vT[6]}, 1, v{l4}')
    a(f'v_lshlrev_b32 v{vT[6]}, 2, v{vT[6]}')
    a(f'v_xor_b32 v{vT[6]}, v{vT[6]}, v{l7}')
    a('s_lshl_b32 s34, s23, 3')
    a(f'v_add_u32 v{vT[7]}, s34, v{l3}')
    a(f'v_mul_u32_u24 v{vWg}, 896, v{vT[7]}')
    a(f'v_lshl_add_u32 v{vWg}, v{vT[6]}, 4, v{vWg}')
    a('s_lshl_b32 s34, s21, 7')
    a(f'v_add_u32 v{vWg}, s34, v{vWg}')
    a('s_lshl_b32 s34, s23, 2')
    a(f'v_add_u32 v{vT[6]}, s34, v{l4}')
    a(f'v_and_b32 v{vT[6]}, 7, v{vT[6]}')
    a(f'v_xor_b32 v{vT[6]}, v{vT[6]}, v{l7}')
    a(f'v_mul_u32_u24 v{vUg}, 1792, v{vT[7]}')
    a(f'v_lshl_add_u32 v{vUg}, v{vT[6]}, 4, v{vUg}')
    a(f's_mul_i32 s34, s20, {64*1792}')
    a(f's_add_u32 s34, s34, {WS_U}')
    a(f'v_add_u32 v{vUg}, s34, v{vUg}')
    a('s_lshl_b32 s47, s23, 10')
    def w_dma(blk):
        a(f's_add_u32 m0, s47, {L_W + (blk%4)*8192}')
        if blk < 7:
            a(f's_mov_b32 s36, {blk*64*896}')
            a(f'buffer_load_dwordx4 v{vWg}, s[8:11], s36 offen lds')
        else:
            a(f's_mov_b32 s36, {(blk-7)*64*896}')
            a(f'buffer_load_dwordx4 v{vWg}, s[12:15], s36 offen lds')
    def u_dma(blk):
        a(f's_add_u32 m0, s47, {L_PH + (blk%4)*8192}')
        a(f's_mov_b32 s36, {(blk-7)*128}')
        a(f'buffer_load_dwordx4 v{vUg}, s[16:19], s36 offen lds')
    for b in range(3):
        w_dma(b)
    oa = vT[8]
    a(f'v_mul_u32_u24 v{oa}, {O_RS}, v{tl}')
    a(f'v_lshl_add_u32 v{oa}, v{hh}, 3, v{oa}')
    a('s_mul_i32 s43, s23, 112')
    a(f'v_add_u32 v{oa}, s43, v{oa}')
    d0 = vT[5]; d1 = vT[6]; dn = vT[7]
    for ah in range(2):
        base = vE + 48*ah
        if ah == 0: stamp(a, 5)
        a(f's_waitcnt vmcnt({15 if ah == 0 else 3})')
        stamp(a, 6 + ah)
        for tt in range(2):
            for ks in range(4):
                cc_ = '0' if ks == 0 else vr(vAcc+16*tt, 16)
                a(f'v_mfma_f32_32x32x16_bf16 {vr(vAcc+16*tt,16)}, {vr(base+4*ks,4)}, {vr(base+16+16*tt+4*ks,4)}, {cc_}')
        a.nop(12)
        for tt in range(2):
            acc = vAcc + 16*tt
            a(f'v_mov_b32 v{d0}, v{acc+12}')
            a(f'v_mov_b32 v{d1}, v{acc+12}')
            a('s_nop 1')
            a(f'v_permlane32_swap_b32 v{d0}, v{d1}')
            a('s_nop 1')
            bf16_round(a, dn, d1)
            a(f'v_add_f32 v{dn}, {f2u(1e-6)}, v{dn}')
            bf16_round(a, dn, dn)
            a(f'v_rcp_f32 v{dn}, v{dn}')
            for j in range(8):
                a(f'v_cvt_pk_bf16_f32 v{d0}, v{acc+2*j}, v{acc+2*j+1}')
                a(f'v_lshlrev_b32 v{acc+2*j}, 16, v{d0}')
                a(f'v_and_b32 v{acc+2*j+1}, 0xffff0000, v{d0}')
            for j in range(16):
                a(f'v_mul_f32 v{acc+j}, v{acc+j}, v{dn}')
            for j in range(8):
                a(f'v_cvt_pk_bf16_f32 v{acc+j}, v{acc+2*j}, v{acc+2*j+1}')
            for q in range(4):
                if q == 3:
                    a('s_mov_b64 exec, 0xffffffff')
                a(f'ds_write_b64 v{oa}, {vr(acc+2*q,2)} offset:{tt*32*O_RS + ah*56 + q*16}')
                if q == 3:
                    a('s_mov_b64 exec, -1')
    G1, G2, rr, cc = vT[0], vT[1], vT[2], vT[3]
    a(f'v_bfe_u32 v{G1}, v{vLane}, 4, 1')
    a(f'v_lshrrev_b32 v{G2}, 5, v{vLane}')
    a(f'v_bfe_u32 v{rr}, v{vLane}, 2, 2')
    a(f'v_and_b32 v{cc}, 3, v{vLane}')
    a(f'v_lshl_add_u32 v{cc}, v{G1}, 2, v{cc}')
    a(f'v_lshrrev_b32 v{vT[4]}, 1, v{rr}')
    a(f'v_lshl_add_u32 v{rr}, v{G2}, 3, v{rr}')
    a(f'v_lshlrev_b32 v{rr}, 7, v{rr}')
    a(f'v_lshl_add_u32 v{rr}, v{cc}, 3, v{rr}')
    a('s_lshr_b32 s40, s23, 1')
    a('s_lshl_b32 s41, s40, 11')
    a(f's_add_u32 s41, s41, {L_W}')
    a(f'v_add_u32 v{rr}, s41, v{rr}')
    a(f'v_lshl_add_u32 v{vAad[0]}, v{vT[4]}, 6, v{rr}')
    a(f'v_xor_b32 v{vT[4]}, 1, v{vT[4]}')
    a(f'v_lshl_add_u32 v{vAad[1]}, v{vT[4]}, 6, v{rr}')
    a(f'v_and_b32 v{vT[4]}, 31, v{vLane}')
    a(f'v_lshrrev_b32 v{vT[5]}, 5, v{vLane}')
    a('s_and_b32 s41, s23, 1')
    a('s_lshl_b32 s41, s41, 5')
    a(f'v_add_u32 v{vT[4]}, s41, v{vT[4]}')
    a('s_lshl_b32 s42, s40, 5')
    a(f'v_mul_u32_u24 v{vBo}, {O_RS}, v{vT[4]}')
    a(f'v_lshl_add_u32 v{vBo}, v{vT[5]}, 4, v{vBo}')
    a(f'v_add_u32 v{vBo}, s42, v{vBo}')
    a('s_lshl_b32 s42, s40, 1')
    a(f'v_add_u32 v{vT[5]}, s42, v{vT[5]}')
    a(f'v_bfe_u32 v{vT[6]}, v{vT[4]}, 1, 3')
    a(f'v_xor_b32 v{vT[5]}, v{vT[5]}, v{vT[6]}')
    a(f'v_lshlrev_b32 v{vBu}, 7, v{vT[4]}')
    a(f'v_lshl_add_u32 v{vBu}, v{vT[5]}, 4, v{vBu}')
    a(f'v_add_u32 v{vBu}, {L_PH}, v{vBu}')
    for i in range(32):
        a(f'v_mov_b32 v{vAcc+i}, 0')
    xa = vT[9]; xv = vE
    a(f'v_lshrrev_b32 v{vT[4]}, 3, v0')
    a(f'v_and_b32 v{vT[5]}, 7, v0')
    a('s_lshl_b32 s41, s20, 6')
    a(f'v_add_u32 v{vT[6]}, s41, v{vT[4]}')
    a(f'v_mul_u32_u24 v{xa}, 896, v{vT[6]}')
    a(f'v_lshl_add_u32 v{xa}, v{vT[5]}, 4, v{xa}')
    a('s_lshl_b32 s52, s21, 7')
    a(f'buffer_load_dwordx4 {vr(xv,4)}, v{xa}, s[4:7], s52 offen')
    a('s_waitcnt lgkmcnt(0)')
    a('s_barrier')
    stamp(a, 1)
    ops = []
    ops += [('x', -1)]
    issued = [('w', 0), ('w', 1), ('w', 2), ('x', -1)]
    for blk in range(NB):
        nb = blk + 3
        if nb < NB:
            w_dma(nb); issued.append(('w', nb))
            if nb >= 7:
                u_dma(nb); issued.append(('u', nb))
        if blk == 0:
            later = len([1 for (k, b) in issued[issued.index(('w', 0))+1:]])
            a(f's_waitcnt vmcnt({later})')
            a('s_barrier')
        for i in range(2):
            for half in range(2):
                a(f'ds_read_b64_tr_b16 {vr(vFr+4*i+2*half,2)}, v{vAad[i]} offset:{(blk%4)*8192 + 4*half*128}')
        if blk < 7:
            a(f'ds_read_b128 {vr(vFr+8,4)}, v{vBo} offset:{blk*128}')
        else:
            a(f'ds_read_b128 {vr(vFr+8,4)}, v{vBu} offset:{(blk%4)*8192}')
        a('s_waitcnt lgkmcnt(0)')
        for i in range(2):
            a(f'v_mfma_f32_32x32x16_bf16 {vr(vAcc+16*i,16)}, {vr(vFr+4*i,4)}, {vr(vFr+8,4)}, {vr(vAcc+16*i,16)}')
        if blk + 1 < NB:
            last = max(idx for idx, (k, b) in enumerate(issued) if b == blk + 1)
            a(f's_waitcnt vmcnt({len(issued) - 1 - last})')
            a('s_barrier')
    stamp(a, 2)
    a.nop(8)
    a('s_barrier')
    wa = vT[0]; ra = vT[1]
    a(f'v_and_b32 v{vT[2]}, 31, v{vLane}')
    a(f'v_mul_u32_u24 v{wa}, 272, v{vT[2]}')
    a(f'v_lshrrev_b32 v{vT[2]}, 5, v{vLane}')
    a(f'v_lshl_add_u32 v{wa}, v{vT[2]}, 4, v{wa}')
    a(f's_mul_i32 s41, s40, {SLAB}')
    a('s_and_b32 s42, s23, 1')
    a(f's_mul_i32 s42, s42, {32*272}')
    a('s_add_u32 s41, s41, s42')
    a(f'v_add_u32 v{wa}, s41, v{wa}')
    for ii in range(2):
        for q in range(4):
            a(f'ds_write_b128 v{wa}, {vr(vAcc+16*ii+4*q,4)} offset:{(32*ii+8*q)*4}')
    a(f'v_mul_u32_u24 v{ra}, 272, v{vT[4]}')
    a(f'v_lshl_add_u32 v{ra}, v{vT[5]}, 5, v{ra}')
    a('s_waitcnt lgkmcnt(0)')
    a('s_barrier')
    g = vE + 8
    for kg in range(4):
        for h2 in range(2):
            a(f'ds_read_b128 {vr(g+8*kg+4*h2,4)}, v{ra} offset:{kg*SLAB + h2*16}')
    a('s_waitcnt vmcnt(0) lgkmcnt(0)')
    for kg in range(1, 4):
        for e in range(8):
            a(f'v_add_f32 v{g+e}, v{g+e}, v{g+8*kg+e}')
    t0 = vT[6]
    for e in range(4):
        xx = xv + e
        a(f'v_lshlrev_b32 v{t0}, 16, v{xx}')
        a(f'v_and_b32 v{xx}, 0xffff0000, v{xx}')
        a(f'v_add_f32 v{g+2*e}, v{g+2*e}, v{t0}')
        a(f'v_add_f32 v{g+2*e+1}, v{g+2*e+1}, v{xx}')
        a(f'v_cvt_pk_bf16_f32 v{xx}, v{g+2*e}, v{g+2*e+1}')
    a(f'buffer_store_dwordx4 {vr(xv,4)}, v{xa}, s[48:51], s52 offen')
    a.lab(END)
    stamp(a, 3)
    stamp_flush(a, 8, 2, vE)
    a.lab(END + '_x')
    a('s_endpgm')
    return name, R.hi, LDS

def main():
    a = Asm()
    SF = os.environ.get('STORE_FLAGS', '')
    infos = []
    infos.append(gen_k1(a) + (224,))
    infos.append(gen_k2(a) + (240,))
    infos.append(gen_k3(a) + (224,))
    out = []
    for n, nv, lds, g in infos:
        out.append(f'; @launch kernel={n} grid=({g},1,1) block=(512,1,1) lds={lds}')
    out.append('.amdgcn_target "amdgcn-amd-amdhsa--gfx950"')
    out.append('.text')
    for l in a.L:
        if SF and 'buffer_store' in l and 's[16:19]' in l:
            l = l + ' ' + SF
        out.append(l)
    out.append('.section .rodata,"a"')
    for n, nv, lds, g in infos:
        out.append('.p2align 6')
        out.append(descriptor(n, nv))
    open(sys.argv[1] if len(sys.argv) > 1 else 'parallel_sum__linear_kernel_hedgehog__mixer_gmlp__prompt.s', 'w').write('\n'.join(out) + '\n')
    for i in infos: print(i, file=sys.stderr)

main()
```

```python
import sys, struct, os

def f2u(x):
    return struct.unpack('<I', struct.pack('<f', x))[0]

class Asm:
    def __init__(s):
        s.L = []; s.uid = 0
    def __call__(s, t):
        s.L.append('    ' + t)
    def lab(s, l):
        s.L.append(l + ':')
    def newlab(s, p='L'):
        s.uid += 1
        return f'{p}_{s.uid}'
    def nop(s, n):
        while n > 0:
            k = min(n, 16)
            s(f's_nop {k-1}')
            n -= k

class Regs:
    def __init__(s, start=0):
        s.n = start; s.hi = start
    def alloc(s, n=1, align=1):
        s.n = (s.n + align - 1) // align * align
        r = s.n
        s.n += n
        s.hi = max(s.hi, s.n)
        return r

def vr(b, n=1):
    return f'v{b}' if n == 1 else f'v[{b}:{b+n-1}]'

S = 2048; D = 448; H = 16; DH = 28; FH = 896
WS_PHIQ = 0
WS_PHIK = WS_PHIQ + S*H*64*2
WS_V = WS_PHIK + S*H*64*2
WS_Z1 = WS_V + S*D*2 + 4096
WS_Z2 = WS_Z1 + S*FH*2
WS_U = WS_Z2 + S*FH*2
WS_ST = WS_U + S*FH*2
WS_KVT = WS_ST + S*8*2*4
WS_END = WS_KVT + H*32*64*2
WS_SIZE = 268435456

L2E = 1.4426950408889634
GELU_K = -2.0 * 0.7978845608028654 * L2E
OOB = 0x40000000

STAMP = bool(os.environ.get('STAMP'))
WS_STAMP = 200*1024*1024
def stamp(a, i):
    if STAMP:
        a(f's_memtime s[{64+2*i}:{65+2*i}]')
        a('s_waitcnt lgkmcnt(0)')
def stamp_flush(a, n, kidx, tmpv):
    if not STAMP: return
    a('s_mov_b64 exec, 1')
    a('s_lshl_b32 s60, s2, 3')
    a('s_add_u32 s60, s60, s23')
    a('s_lshl_b32 s60, s60, 6')
    a(f's_add_u32 s60, s60, {WS_STAMP + kidx*1024*1024}')
    a(f'v_mov_b32 v{tmpv+1}, 0')
    for i in range(n):
        a(f'v_mov_b32 v{tmpv}, s{64+2*i}')
        a(f'buffer_store_dword v{tmpv}, v{tmpv+1}, s[16:19], s60 offen offset:{4*i}')
        a('s_nop 1')
    a('s_mov_b64 exec, -1')

def srd(a, d, lo, hi, nbytes):
    a(f's_mov_b32 s{d}, s{lo}')
    a(f's_and_b32 s{d+1}, s{hi}, 0xffff')
    a(f's_mov_b32 s{d+2}, {nbytes}')
    a(f's_mov_b32 s{d+3}, 0x00020000')

def bf16_round(a, dst, src):
    a(f'v_cvt_pk_bf16_f32 v{dst}, v{src}, v{src}')
    a(f'v_lshlrev_b32 v{dst}, 16, v{dst}')

def xhalf(a, x, t0, t1, op, dst):
    a(f'v_mov_b32 v{t0}, v{x}')
    a(f'v_mov_b32 v{t1}, v{x}')
    a('s_nop 1')
    a(f'v_permlane32_swap_b32 v{t0}, v{t1}')
    a('s_nop 1')
    a(f'{op} v{dst}, v{t0}, v{t1}')

def ln_finish(a, sm, sq, n):
    inv = f2u(1.0/n)
    a(f'v_mul_f32 v{sm}, {inv}, v{sm}')
    a(f'v_mul_f32 v{sq}, {inv}, v{sq}')
    a(f'v_fma_f32 v{sq}, -v{sm}, v{sm}, v{sq}')
    a(f'v_max_f32 v{sq}, 0, v{sq}')
    bf16_round(a, sm, sm)
    bf16_round(a, sq, sq)
    a(f'v_add_f32 v{sq}, {f2u(1e-5)}, v{sq}')
    bf16_round(a, sq, sq)
    a(f'v_sqrt_f32 v{sq}, v{sq}')
    a('s_nop 0')
    bf16_round(a, sq, sq)
    a(f'v_rcp_f32 v{sq}, v{sq}')
    a('s_nop 0')
    a(f'v_mul_f32 v{sm}, v{sm}, v{sq}')

def header(a, name):
    a.L.append('.p2align 8')
    a.L.append(f'.globl {name}')
    a.L.append(f'.type {name},@function')
    a.lab(name)

def descriptor(name, nv, ns=102):
    nv8 = (nv + 7) // 8 * 8
    return f""".amdhsa_kernel {name}
  .amdhsa_next_free_vgpr {nv8}
  .amdhsa_next_free_sgpr {ns}
  .amdhsa_accum_offset {nv8}
  .amdhsa_group_segment_fixed_size 0
  .amdhsa_kernarg_size 96
  .amdhsa_user_sgpr_count 2
  .amdhsa_user_sgpr_kernarg_segment_ptr 1
  .amdhsa_system_sgpr_workgroup_id_x 1
.end_amdhsa_kernel
"""

def tr_addr(a, dst, vLane, rs, T):
    G1, G2, rr, cc = T[0], T[1], T[2], T[3]
    a(f'v_bfe_u32 v{G1}, v{vLane}, 4, 1')
    a(f'v_lshrrev_b32 v{G2}, 5, v{vLane}')
    a(f'v_bfe_u32 v{rr}, v{vLane}, 2, 2')
    a(f'v_and_b32 v{cc}, 3, v{vLane}')
    a(f'v_lshl_add_u32 v{rr}, v{G2}, 3, v{rr}')
    a(f'v_mul_u32_u24 v{dst}, {rs}, v{rr}')
    a(f'v_lshl_add_u32 v{cc}, v{G1}, 2, v{cc}')
    a(f'v_lshl_add_u32 v{dst}, v{cc}, 3, v{dst}')

K1_WB = 14336
K1_W = 114688
K1_LDS = K1_W + 3*K1_WB

def gen_k1(a):
    name = 'k1_proj_kernel'
    header(a, name)
    END = 'k1_end'
    a('s_cmp_ge_u32 s2, 224')
    a(f's_cbranch_scc1 {END}_x')
    a('s_load_dwordx4 s[24:27], s[0:1], 0')
    a('s_load_dwordx2 s[28:29], s[0:1], 16')
    a('s_load_dwordx2 s[30:31], s[0:1], 40')
    a('s_load_dwordx2 s[32:33], s[0:1], 88')
    a('s_load_dwordx2 s[54:55], s[0:1], 48')
    stamp(a, 0)
    a('s_and_b32 s20, s2, 7')
    a('s_lshl_b32 s20, s20, 1')
    a('s_lshr_b32 s21, s2, 3')
    a('s_and_b32 s34, s21, 1')
    a('s_add_u32 s20, s20, s34')
    a('s_lshr_b32 s21, s2, 4')
    R = Regs(1)
    vLane = R.alloc()
    vT = [R.alloc() for _ in range(8)]
    vWg = [R.alloc(), R.alloc()]
    vAad = R.alloc(); vBad = [R.alloc() for _ in range(4)]
    vAcc = R.alloc(64, 4)
    vFr = R.alloc(40, 4)
    vPhi = R.alloc(16, 4)
    vE = R.alloc(48, 4)
    vU = R.alloc(48, 4)
    vXg = vFr
    a(f'v_and_b32 v{vLane}, 63, v0')
    a(f'v_lshrrev_b32 v{vT[0]}, 6, v0')
    a(f'v_lshlrev_b32 v{vT[1]}, 4, v0')
    a(f'v_readfirstlane_b32 s23, v{vT[0]}')
    a('s_mul_i32 s34, s23, 896')
    a(f'v_add_u32 v{vT[2]}, s34, v{vLane}')
    for j in range(14):
        pos = vT[3]; row = vT[4]; p = vT[5]; t6 = vT[6]
        a(f'v_add_u32 v{pos}, {64*j}, v{vT[2]}')
        a(f'v_mul_u32_u24 v{row}, 18725, v{pos}')
        a(f'v_lshrrev_b32 v{row}, 20, v{row}')
        a(f'v_lshrrev_b32 v{t6}, 1, v{row}')
        a(f'v_and_b32 v{t6}, 7, v{t6}')
        a(f'v_xor_b32 v{pos}, v{pos}, v{t6}') if False else None
        a(f'v_mul_u32_u24 v{p}, 56, v{row}')
        a(f'v_sub_u32 v{p}, v{pos}, v{p}')
        a(f'v_xor_b32 v{t6}, v{t6}, v{p}')
        a(f'v_and_b32 v{t6}, 7, v{t6}')
        a(f'v_and_b32 v{p}, 0xfffffff8, v{pos}') if False else None
        a(f'v_sub_u32 v{pos}, v{pos}, v{p}')
        a(f'v_and_b32 v{p}, 56, v{p}')
        a(f'v_add3_u32 v{pos}, v{pos}, v{p}, v{t6}')
        a(f'v_lshlrev_b32 v{vXg+j}, 4, v{pos}')
    a('s_mul_i32 s38, s20, 114688')
    a('s_mul_i32 s35, s23, 14336')
    a('s_waitcnt lgkmcnt(0)')
    stamp(a, 4)
    srd(a, 4, 24, 25, S*D*2)
    for j in range(14):
        a(f's_add_u32 m0, s35, {1024*j}')
        a('s_nop 0')
        a(f'buffer_load_dwordx4 v{vXg+j}, s[4:7], s38 offen lds')
    srd(a, 12, 28, 29, H*DH*DH*2)
    srd(a, 16, 32, 33, WS_SIZE)
    a('s_cmp_lt_u32 s21, 6')
    a('s_mov_b32 s22, 2688')
    a('s_cselect_b32 s22, s22, 3584')
    a('s_cselect_b32 s34, s26, s30')
    a('s_cselect_b32 s35, s27, s31')
    a(f's_mov_b32 s36, {D*3*D*2}')
    a(f's_cselect_b32 s36, s36, {D*4*D*2}')
    a('s_cselect_b32 s37, 0, 6')
    a('s_sub_u32 s37, s21, s37')
    a('s_mul_i32 s37, s37, 448')
    a('s_add_u32 s8, s34, s37')
    a('s_addc_u32 s9, s35, 0')
    a('s_and_b32 s9, s9, 0xffff')
    a('s_sub_u32 s10, s36, s37')
    a('s_mov_b32 s11, 0x00020000')
    a('s_lshl_b32 s34, s23, 7')
    a(f'v_add_u32 v{vT[2]}, s34, v{vLane}')
    for j in range(2):
        c = vT[3]; row = vT[4]; col = vT[5]
        a(f'v_add_u32 v{c}, {64*j}, v{vT[2]}')
        a(f'v_mul_u32_u24 v{row}, 2341, v{c}')
        a(f'v_lshrrev_b32 v{row}, 16, v{row}')
        a(f'v_mul_u32_u24 v{col}, 28, v{row}')
        a(f'v_sub_u32 v{col}, v{c}, v{col}')
        a(f'v_lshlrev_b32 v{col}, 4, v{col}')
        a(f'v_mul_lo_u32 v{vWg[j]}, v{row}, s22')
        a(f'v_add_u32 v{vWg[j]}, v{vWg[j]}, v{col}')
    a('s_lshl_b32 s48, s23, 11')
    a(f's_add_u32 s48, s48, {K1_W}')
    def w_dma(blk):
        lab = a.newlab('k1w')
        a('s_cmp_eq_u32 s23, 7')
        a(f's_cbranch_scc1 {lab}')
        a(f's_mul_i32 s38, s22, {32*blk}')
        for j in range(2):
            a(f's_add_u32 m0, s48, {(blk%3)*K1_WB + j*1024}')
            a('s_nop 0')
            a(f'buffer_load_dwordx4 v{vWg[j]}, s[8:11], s38 offen lds')
        a.lab(lab)
    w_dma(0)
    w_dma(1)
    a('s_and_b32 s39, s21, 1')
    a('s_mul_i32 s40, s39, 12544')
    vPl = vE
    a(f'v_add_u32 v{vT[2]}, 8192, v{vT[1]}')
    a(f'buffer_load_dwordx4 {vr(vPl,4)}, v{vT[1]}, s[12:15], s40 offen')
    a(f'v_mov_b32 v{vT[3]}, {OOB}')
    a('v_cmp_gt_u32 vcc, 272, v0')
    a('s_nop 1')
    a(f'v_cndmask_b32 v{vT[2]}, v{vT[3]}, v{vT[2]}, vcc')
    a(f'buffer_load_dwordx4 {vr(vPl+4,4)}, v{vT[2]}, s[12:15], s40 offen')
    tr_addr(a, vAad, vLane, 448, vT[2:6])
    a(f'v_add_u32 v{vAad}, {K1_W}, v{vAad}')
    a(f'v_and_b32 v{vT[2]}, 31, v{vLane}')
    a(f'v_lshrrev_b32 v{vT[3]}, 5, v{vLane}')
    a(f'v_bfe_u32 v{vT[4]}, v{vT[2]}, 1, 3')
    for m in range(4):
        a(f'v_add_u32 v{vT[5]}, {2*m}, v{vT[3]}')
        a(f'v_xor_b32 v{vT[5]}, v{vT[5]}, v{vT[4]}')
        a(f'v_mul_u32_u24 v{vBad[m]}, 896, v{vT[2]}')
        a(f'v_lshl_add_u32 v{vBad[m]}, v{vT[5]}, 4, v{vBad[m]}')
    stamp(a, 5)
    a('s_waitcnt vmcnt(0)')
    stamp(a, 6)
    a(f'v_add_u32 v{vT[2]}, {K1_W + 2*K1_WB}, v{vT[1]}')
    a(f'ds_write_b128 v{vT[2]}, {vr(vPl,4)}')
    a('v_cmp_gt_u32 vcc, 320, v0')
    a('s_and_saveexec_b64 s[50:51], vcc')
    a(f'ds_write_b128 v{vT[2]}, {vr(vPl+4,4)} offset:8192')
    a('s_mov_b64 exec, -1')
    stamp(a, 7)
    vX = vAcc
    row = vT[2]; qd = vT[3]; lo = vT[4]
    a(f'v_lshrrev_b32 v{row}, 2, v0')
    a(f'v_and_b32 v{qd}, 3, v0')
    a(f'v_mul_u32_u24 v{lo}, 896, v{row}')
    a(f'v_mul_u32_u24 v{qd}, 224, v{qd}')
    a(f'v_add_u32 v{lo}, v{lo}, v{qd}')
    for j in range(14):
        a(f'ds_read_b128 {vr(vX+4*j,4)}, v{lo} offset:{16*j}')
    def U(i):
        return (vFr + i) if i < 40 else ((vE + 24 + i - 40) if i < 64 else (vU + i - 64))
    sm2 = vE+8; sq2 = vE+10; t0 = vE+12; t1 = vE+13; sm = vE+14; sq = vE+15
    for j in range(56):
        if j % 4 == 0:
            a(f's_waitcnt lgkmcnt({13 - j//4})')
        a(f'v_lshlrev_b32 v{U(2*j)}, 16, v{vX+j}')
        a(f'v_and_b32 v{U(2*j+1)}, 0xffff0000, v{vX+j}')
        if j == 0:
            a(f'v_pk_mul_f32 {vr(sq2,2)}, {vr(U(0),2)}, {vr(U(0),2)}')
            a(f'v_mov_b32 v{sm2}, v{U(0)}')
            a(f'v_mov_b32 v{sm2+1}, v{U(1)}')
        else:
            a(f'v_pk_fma_f32 {vr(sq2,2)}, {vr(U(2*j),2)}, {vr(U(2*j),2)}, {vr(sq2,2)}')
            a(f'v_pk_add_f32 {vr(sm2,2)}, {vr(sm2,2)}, {vr(U(2*j),2)}')
    a(f'v_add_f32 v{sm}, v{sm2}, v{sm2+1}')
    a(f'v_add_f32 v{sq}, v{sq2}, v{sq2+1}')
    a('s_nop 1')
    for perm in ('[1,0,3,2]', '[2,3,0,1]'):
        a(f'v_add_f32_dpp v{t0}, v{sm}, v{sm} quad_perm:{perm} row_mask:0xf bank_mask:0xf')
        a(f'v_add_f32_dpp v{t1}, v{sq}, v{sq} quad_perm:{perm} row_mask:0xf bank_mask:0xf')
        a(f'v_mov_b32 v{sm}, v{t0}')
        a(f'v_mov_b32 v{sq}, v{t1}')
        a('s_nop 1')
    ln_finish(a, sm, sq, 448.0)
    rr2 = vE+8; nm2 = vE+10
    a(f'v_mov_b32 v{rr2}, v{sq}')
    a(f'v_mov_b32 v{rr2+1}, v{sq}')
    a(f'v_sub_f32 v{nm2}, 0, v{sm}')
    a(f'v_sub_f32 v{nm2+1}, 0, v{sm}')
    for j in range(56):
        a(f'v_pk_fma_f32 {vr(U(2*j),2)}, {vr(U(2*j),2)}, {vr(rr2,2)}, {vr(nm2,2)}')
        a(f'v_cvt_pk_bf16_f32 v{vX+j}, v{U(2*j)}, v{U(2*j+1)}')
        if j % 4 == 3:
            a(f'ds_write_b128 v{lo}, {vr(vX+j-3,4)} offset:{4*(j-3)}')
    for i in range(64):
        a(f'v_mov_b32 v{vAcc+i}, 0')
    a('s_waitcnt lgkmcnt(0)')
    a('s_barrier')
    G1, G2, rr, cc = vE+16, vE+17, vE+18, vE+19
    pa = vE + 20
    a(f'v_bfe_u32 v{G1}, v{vLane}, 4, 1')
    a(f'v_lshrrev_b32 v{G2}, 5, v{vLane}')
    a(f'v_bfe_u32 v{rr}, v{vLane}, 2, 2')
    a(f'v_and_b32 v{cc}, 3, v{vLane}')
    a(f'v_lshl_add_u32 v{rr}, v{G2}, 2, v{rr}')
    a(f'v_mul_u32_u24 v{pa}, 56, v{rr}')
    a(f'v_lshl_add_u32 v{cc}, v{G1}, 2, v{cc}')
    a(f'v_lshl_add_u32 v{pa}, v{cc}, 3, v{pa}')
    a('s_lshr_b32 s40, s23, 1')
    a('s_mul_i32 s40, s40, 3136')
    a(f's_add_u32 s40, s40, {K1_W + 2*K1_WB}')
    a(f'v_add_u32 v{pa}, s40, v{pa}')
    for ah in range(2):
        for ks in range(2):
            for half in range(2):
                a(f'ds_read_b64_tr_b16 {vr(vPhi+ah*8+ks*4+2*half,2)}, v{pa} offset:{ah*1568 + (16*ks+8*half)*56}')
    a('s_waitcnt lgkmcnt(0)')
    a('s_barrier')
    stamp(a, 1)

    LZ = 'k1_zpath'
    a('s_cmp_ge_u32 s21, 6')
    a(f's_cbranch_scc1 {LZ}')

    def mainloop(kind):
        if kind == 'h':
            a('s_lshr_b32 s40, s23, 1')
            a('s_mul_i32 s40, s40, 112')
            a('s_and_b32 s41, s23, 1')
            a(f's_mul_i32 s41, s41, {64*896}')
            nA, nB = 2, 2
            aoff = [0, 56]; boff = [0, 32*896]
        else:
            a('s_lshr_b32 s40, s23, 2')
            a('s_mul_i32 s40, s40, 256')
            a('s_and_b32 s41, s23, 3')
            a(f's_mul_i32 s41, s41, {32*896}')
            nA, nB = 4, 1
            aoff = [0, 64, 128, 192]; boff = [0]
        va = vT[5]
        a(f'v_add_u32 v{va}, s40, v{vAad}')
        for m in range(4):
            a(f'v_add_u32 v{vBad[m]}, s41, v{vBad[m]}')
        NBLK = 14
        for blk in range(NBLK):
            if blk + 2 < NBLK:
                w_dma(blk + 2)
            for ks in range(2):
                fb = vFr + ks*20
                for i in range(nA):
                    for half in range(2):
                        off = (blk % 3)*K1_WB + (16*ks + 4*half)*448 + aoff[i]
                        a(f'ds_read_b64_tr_b16 {vr(fb+4*i+2*half,2)}, v{va} offset:{off}')
                for i in range(nB):
                    off = boff[i] + (blk >> 1)*128
                    a(f'ds_read_b128 {vr(fb+4*(nA+i),4)}, v{vBad[2*(blk&1)+ks]} offset:{off}')
            nrd = 2*nA + nB
            for ks in range(2):
                a(f's_waitcnt lgkmcnt({nrd if ks == 0 else 0})')
                fb = vFr + ks*20
                for i in range(nA):
                    for jb in range(nB):
                        t = i*nB + jb
                        a(f'v_mfma_f32_32x32x16_bf16 {vr(vAcc+16*t,16)}, {vr(fb+4*i,4)}, {vr(fb+4*(nA+jb),4)}, {vr(vAcc+16*t,16)}')
            if blk + 1 < NBLK:
                a(f's_waitcnt vmcnt({2 if blk + 2 < NBLK else 0})')
                a('s_barrier')
        stamp(a, 2)
        srd(a, 56, 54, 55, S*S*2)
        a('s_and_b32 s38, s2, 7')
        a('s_lshl_b32 s38, s38, 20')
        a('s_lshr_b32 s49, s2, 3')
        a('s_lshl_b32 s49, s49, 13')
        a('s_add_u32 s38, s38, s49')
        for m in range(5):
            a(f'buffer_load_dwordx4 {vr(vU+44,4)}, v{vT[1]}, s[56:59], s38 offen')
            a(f's_add_u32 s38, s38, {14336*16}')
        a('s_barrier')

    ERS = 272
    mainloop('h')
    a('s_and_b32 s39, s21, 1')
    a('s_lshl_b32 s39, s39, 3')
    a('s_lshr_b32 s40, s23, 1')
    a('s_lshl_b32 s40, s40, 1')
    a('s_add_u32 s39, s39, s40')
    a('s_mov_b32 s42, 0')
    a('s_mov_b32 s43, -1')
    tl = vT[0]; hh = vT[1]; wa = vT[2]; ra = vT[3]; ga = vT[4]
    a(f'v_and_b32 v{tl}, 31, v{vLane}')
    a(f'v_lshrrev_b32 v{hh}, 5, v{vLane}')
    a(f's_mul_i32 s45, s23, {64*ERS}')
    a(f'v_mul_u32_u24 v{wa}, {ERS}, v{tl}')
    a(f'v_lshl_add_u32 v{wa}, v{hh}, 3, v{wa}')
    a(f'v_add_u32 v{wa}, s45, v{wa}')
    a('s_lshl_b32 s40, s20, 7')
    a('s_and_b32 s41, s23, 1')
    a('s_lshl_b32 s41, s41, 6')
    a('s_add_u32 s40, s40, s41')
    LV = 'k1_vpath'
    a('s_cmp_ge_u32 s21, 4')
    a(f's_cbranch_scc1 {LV}')
    P = vE; p = vE + 8
    mx = vE + 24; mn = vE + 25; u0 = vE + 26; u1 = vE + 27; sp = vE + 28; sn = vE + 29
    en = vFr; ep = vFr + 16; T2 = vE + 32
    mx2 = vU; mn2 = vU + 2; sp2 = vU + 4; sn2 = vU + 6
    a(f's_mov_b32 s44, {f2u(L2E)}')
    a(f's_mov_b32 s45, {f2u(L2E)}')
    a(f's_mov_b32 s46, {f2u(-L2E)}')
    a(f's_mov_b32 s47, {f2u(-L2E)}')
    a(f's_mul_i32 s53, s23, {64*ERS}')
    for ah in range(2):
        for b in range(2):
            acc = vAcc + 16*(ah*2+b)
            for j in range(8):
                a(f'v_cvt_pk_bf16_f32 v{P+j}, v{acc+2*j}, v{acc+2*j+1}')
            a(f'v_cndmask_b32 v{P+6}, v{P+6}, 0, s[42:43]')
            a(f'v_cndmask_b32 v{P+7}, v{P+7}, 0, s[42:43]')
            a('s_nop 1')
            a(f'v_mfma_f32_32x32x16_bf16 {vr(T2,16)}, {vr(vPhi+ah*8,4)}, {vr(P,4)}, 0')
            a(f'v_mfma_f32_32x32x16_bf16 {vr(T2,16)}, {vr(vPhi+ah*8+4,4)}, {vr(P+4,4)}, {vr(T2,16)}')
            a.nop(12)
            for j in range(8):
                a(f'v_cvt_pk_bf16_f32 v{u0}, v{T2+2*j}, v{T2+2*j+1}')
                a(f'v_lshlrev_b32 v{p+2*j}, 16, v{u0}')
                a(f'v_and_b32 v{p+2*j+1}, 0xffff0000, v{u0}')
            for j in range(12, 16):
                a(f'v_cndmask_b32 v{p+j}, v{p+j}, v{p+11}, s[42:43]')
            a(f'v_max3_f32 v{mx}, v{p}, v{p+1}, v{p+2}')
            a(f'v_min3_f32 v{mn}, v{p}, v{p+1}, v{p+2}')
            for j in range(3, 15, 2):
                a(f'v_max3_f32 v{mx}, v{mx}, v{p+j}, v{p+j+1}')
                a(f'v_min3_f32 v{mn}, v{mn}, v{p+j}, v{p+j+1}')
            a(f'v_max_f32 v{mx}, v{mx}, v{p+15}')
            a(f'v_min_f32 v{mn}, v{mn}, v{p+15}')
            xhalf(a, mx, u0, u1, 'v_max_f32', mx)
            xhalf(a, mn, u0, u1, 'v_min_f32', mn)
            a(f'v_mul_f32 v{mx2}, s44, v{mx}')
            a(f'v_mul_f32 v{mn2}, s44, v{mn}')
            a(f'v_sub_f32 v{mx2}, 0, v{mx2}')
            for j in range(0, 16, 2):
                a(f'v_pk_fma_f32 {vr(ep+j,2)}, {vr(p+j,2)}, s[44:45], {vr(mx2,2)} op_sel_hi:[1,1,0]')
                a(f'v_pk_fma_f32 {vr(en+j,2)}, {vr(p+j,2)}, s[46:47], {vr(mn2,2)} op_sel_hi:[1,1,0]')
            for j in range(16):
                a(f'v_exp_f32 v{ep+j}, v{ep+j}')
                a(f'v_exp_f32 v{en+j}, v{en+j}')
            a('s_nop 0')
            for j in range(12, 16):
                a(f'v_cndmask_b32 v{ep+j}, v{ep+j}, 0, s[42:43]')
                a(f'v_cndmask_b32 v{en+j}, v{en+j}, 0, s[42:43]')
            a(f'v_pk_add_f32 {vr(sp2,2)}, {vr(ep,2)}, {vr(ep+2,2)}')
            a(f'v_pk_add_f32 {vr(sn2,2)}, {vr(en,2)}, {vr(en+2,2)}')
            for j in range(4, 16, 2):
                a(f'v_pk_add_f32 {vr(sp2,2)}, {vr(sp2,2)}, {vr(ep+j,2)}')
                a(f'v_pk_add_f32 {vr(sn2,2)}, {vr(sn2,2)}, {vr(en+j,2)}')
            a(f'v_add_f32 v{sp}, v{sp2}, v{sp2+1}')
            a(f'v_add_f32 v{sn}, v{sn2}, v{sn2+1}')
            xhalf(a, sp, u0, u1, 'v_add_f32', sp)
            xhalf(a, sn, u0, u1, 'v_add_f32', sn)
            a(f'v_rcp_f32 v{sp2}, v{sp}')
            a(f'v_rcp_f32 v{sn2}, v{sn}')
            a('s_nop 0')
            for j in range(0, 16, 2):
                a(f'v_pk_mul_f32 {vr(ep+j,2)}, {vr(ep+j,2)}, {vr(sp2,2)} op_sel_hi:[1,0]')
                a(f'v_pk_mul_f32 {vr(en+j,2)}, {vr(en+j,2)}, {vr(sn2,2)} op_sel_hi:[1,0]')
            for j in range(8):
                a(f'v_cvt_pk_bf16_f32 v{ep+j}, v{ep+2*j}, v{ep+2*j+1}')
                a(f'v_cvt_pk_bf16_f32 v{en+j}, v{en+2*j}, v{en+2*j+1}')
            for q in range(4):
                for neg, src in ((0, ep), (1, en)):
                    a(f'ds_write_b64 v{wa}, {vr(src+2*q,2)} offset:{b*32*ERS + ah*128 + q*16 + neg*64}')
    LKS = 'k1_kst'
    a('s_cmp_ge_u32 s21, 2')
    a(f's_cbranch_scc1 {LKS}')
    a(f'v_mul_u32_u24 v{ra}, {ERS}, v{tl}')
    a(f'v_lshl_add_u32 v{ra}, v{hh}, 4, v{ra}')
    a(f'v_add_u32 v{ra}, s53, v{ra}')
    a(f'v_lshlrev_b32 v{ga}, 4, v{vLane}')
    a('s_lshl_b32 s46, s40, 11')
    a('s_lshl_b32 s47, s39, 12')
    a('s_add_u32 s46, s46, s47')
    a('s_waitcnt lgkmcnt(0)')
    idx = [(tt, ah, ks) for tt in range(2) for ah in range(2) for ks in range(4)]
    for i, (tt, ah, ks) in enumerate(idx):
        a(f'ds_read_b128 {vr(vAcc+4*i,4)}, v{ra} offset:{tt*32*ERS + ah*128 + ks*32}')
    for i, (tt, ah, ks) in enumerate(idx):
        a(f's_waitcnt lgkmcnt({15-i})')
        a(f's_add_u32 s47, s46, {WS_PHIQ + tt*65536 + ah*4096 + ks*1024}')
        a(f'buffer_store_dwordx4 {vr(vAcc+4*i,4)}, v{ga}, s[16:19], s47 offen')
    a(f's_branch {END}')
    a.lab(LKS)
    a(f'v_lshrrev_b32 v{vT[5]}, 4, v{vLane}')
    a(f'v_and_b32 v{vT[6]}, 15, v{vLane}')
    a(f'v_mul_u32_u24 v{ra}, {ERS}, v{vT[5]}')
    a(f'v_lshl_add_u32 v{ra}, v{vT[6]}, 4, v{ra}')
    a(f'v_add_u32 v{ra}, s53, v{ra}')
    a(f'v_lshlrev_b32 v{ga}, 11, v{vT[5]}')
    a(f'v_lshl_add_u32 v{ga}, v{vT[6]}, 4, v{ga}')
    a('s_lshl_b32 s46, s40, 11')
    a('s_lshl_b32 s47, s39, 7')
    a('s_add_u32 s46, s46, s47')
    a(f's_add_u32 s46, s46, {WS_PHIK}')
    a('s_waitcnt lgkmcnt(0)')
    for i in range(16):
        a(f'ds_read_b128 {vr(vAcc+4*i,4)}, v{ra} offset:{4*i*ERS}')
    for i in range(16):
        a(f's_waitcnt lgkmcnt({15-i})')
        a(f'buffer_store_dwordx4 {vr(vAcc+4*i,4)}, v{ga}, s[16:19], s46 offen')
        a('s_add_u32 s46, s46, 8192')
    a(f's_branch {END}')
    a.lab(LV)
    for ah in range(2):
        for b in range(2):
            acc = vAcc + 16*(ah*2+b)
            for j in range(8):
                a(f'v_cvt_pk_bf16_f32 v{vE+j}, v{acc+2*j}, v{acc+2*j+1}')
            for q in range(4):
                if q == 3:
                    a('s_mov_b64 exec, 0xffffffff')
                a(f'ds_write_b64 v{wa}, {vr(vE+2*q,2)} offset:{b*32*ERS + ah*56 + q*16}')
                if q == 3:
                    a('s_mov_b64 exec, -1')
    a(f'v_lshrrev_b32 v{vT[5]}, 3, v{vLane}')
    a(f'v_and_b32 v{vT[6]}, 7, v{vLane}')
    a(f'v_mul_u32_u24 v{ra}, {ERS}, v{vT[5]}')
    a(f'v_lshl_add_u32 v{ra}, v{vT[6]}, 4, v{ra}')
    a(f'v_add_u32 v{ra}, s45, v{ra}')
    a(f'v_mul_u32_u24 v{ga}, 896, v{vT[5]}')
    a(f'v_lshl_add_u32 v{ga}, v{vT[6]}, 4, v{ga}')
    a('s_mul_i32 s46, s40, 896')
    a('s_mul_i32 s47, s39, 56')
    a('s_add_u32 s46, s46, s47')
    a(f's_add_u32 s46, s46, {WS_V}')
    a(f'v_cmp_gt_u32 vcc, 7, v{vT[6]}')
    a('s_waitcnt lgkmcnt(0)')
    for i in range(8):
        a(f'ds_read_b128 {vr(vAcc+4*i,4)}, v{ra} offset:{8*i*ERS}')
    a('s_and_saveexec_b64 s[50:51], vcc')
    for i in range(8):
        a(f's_waitcnt lgkmcnt({7-i})')
        a(f'buffer_store_dwordx4 {vr(vAcc+4*i,4)}, v{ga}, s[16:19], s46 offen')
        a(f's_add_u32 s46, s46, {8*896}')
    a(f's_branch {END}')

    a.lab(LZ)
    mainloop('z')
    tl = vT[0]; hh = vT[1]; wa = vT[2]; ra = vT[3]; ga = vT[4]; staddr = vT[7]
    a(f'v_and_b32 v{tl}, 31, v{vLane}')
    a(f'v_lshrrev_b32 v{hh}, 5, v{vLane}')
    a(f's_mul_i32 s49, s23, {32*ERS}')
    a(f'v_mul_u32_u24 v{wa}, {ERS}, v{tl}')
    a(f'v_lshl_add_u32 v{wa}, v{hh}, 3, v{wa}')
    a(f'v_add_u32 v{wa}, s49, v{wa}')
    a('s_lshl_b32 s40, s20, 7')
    a('s_and_b32 s41, s23, 3')
    a('s_lshl_b32 s41, s41, 5')
    a('s_add_u32 s40, s40, s41')
    a(f'v_add_u32 v{tl}, s40, v{tl}')
    a('s_sub_u32 s41, s21, 6')
    a('s_and_b32 s45, s41, 3')
    a('s_mul_i32 s45, s45, 448')
    a('s_lshr_b32 s46, s23, 2')
    a('s_lshl_b32 s46, s46, 8')
    a('s_add_u32 s45, s45, s46')
    a('s_cmp_ge_u32 s41, 4')
    a(f's_mov_b32 s46, {WS_Z2}')
    a(f's_cselect_b32 s46, s46, {WS_Z1}')
    a('s_add_u32 s45, s45, s46')
    a('s_mul_i32 s46, s40, 1792')
    a('s_add_u32 s45, s45, s46')
    a('s_and_b32 s46, s41, 3')
    a('s_lshl_b32 s46, s46, 14')
    a(f's_add_u32 s46, s46, {WS_ST}')
    a(f'v_lshlrev_b32 v{staddr}, 2, v{tl}')
    a(f's_mov_b32 s44, {f2u(GELU_K)}')
    a(f's_mov_b32 s47, {f2u(0.044715)}')
    sm = vE + 40; sq = vE + 41; u0 = vE + 42; u1 = vE + 43
    gk = vU
    a(f'v_mov_b32 v{gk}, {f2u(GELU_K*0.044715)}')
    a(f'v_mov_b32 v{gk+1}, {f2u(GELU_K*0.044715)}')
    a(f'v_mov_b32 v{gk+2}, {f2u(GELU_K)}')
    a(f'v_mov_b32 v{gk+3}, {f2u(GELU_K)}')
    a(f'v_mov_b32 v{gk+4}, 1.0')
    a(f'v_mov_b32 v{gk+5}, 1.0')
    a(f'v_mov_b32 v{sm}, 0')
    a(f'v_mov_b32 v{sq}, 0')
    for t in range(4):
        lskip = a.newlab('k1zs')
        if t == 3:
            a('s_cmp_ge_u32 s23, 4')
            a(f's_cbranch_scc1 {lskip}')
        acc = vAcc + 16*t
        xs = vE; w = vE + 16
        for j in range(8):
            a(f'v_cvt_pk_bf16_f32 v{u0}, v{acc+2*j}, v{acc+2*j+1}')
            a(f'v_lshlrev_b32 v{xs+2*j}, 16, v{u0}')
            a(f'v_and_b32 v{xs+2*j+1}, 0xffff0000, v{u0}')
        for j in range(0, 16, 2):
            a(f'v_pk_mul_f32 {vr(w+j,2)}, {vr(xs+j,2)}, {vr(xs+j,2)}')
            a(f'v_pk_fma_f32 {vr(w+j,2)}, {vr(w+j,2)}, {vr(gk,2)}, {vr(gk+2,2)}')
            a(f'v_pk_mul_f32 {vr(w+j,2)}, {vr(w+j,2)}, {vr(xs+j,2)}')
        for j in range(16):
            a(f'v_exp_f32 v{w+j}, v{w+j}')
        a('s_nop 0')
        for j in range(0, 16, 2):
            a(f'v_pk_add_f32 {vr(w+j,2)}, {vr(w+j,2)}, {vr(gk+4,2)}')
        for j in range(16):
            a(f'v_rcp_f32 v{w+j}, v{w+j}')
        a('s_nop 0')
        for j in range(0, 16, 2):
            a(f'v_pk_mul_f32 {vr(w+j,2)}, {vr(w+j,2)}, {vr(xs+j,2)}')
        for j in range(8):
            a(f'v_cvt_pk_bf16_f32 v{xs+j}, v{w+2*j}, v{w+2*j+1}')
        for q in range(4):
            a(f'ds_write_b64 v{wa}, {vr(xs+2*q,2)} offset:{t*64+q*16}')
        for j in range(8):
            a(f'v_dot2c_f32_bf16 v{sq}, v{xs+j}, v{xs+j}')
            a(f'v_lshlrev_b32 v{u0}, 16, v{xs+j}')
            a(f'v_and_b32 v{u1}, 0xffff0000, v{xs+j}')
            a(f'v_add_f32 v{sm}, v{sm}, v{u0}')
            a(f'v_add_f32 v{sm}, v{sm}, v{u1}')
        if t == 3:
            a.lab(lskip)
    a(f'v_lshrrev_b32 v{vT[5]}, 4, v{vLane}')
    a(f'v_and_b32 v{vT[6]}, 15, v{vLane}')
    a(f'v_mul_u32_u24 v{ra}, {ERS}, v{vT[5]}')
    a(f'v_lshl_add_u32 v{ra}, v{vT[6]}, 4, v{ra}')
    a(f'v_add_u32 v{ra}, s49, v{ra}')
    a(f'v_mul_u32_u24 v{ga}, 1792, v{vT[5]}')
    a(f'v_lshl_add_u32 v{ga}, v{vT[6]}, 4, v{ga}')
    a('s_cmp_ge_u32 s23, 4')
    a('s_cselect_b32 s52, 12, 16')
    a(f'v_cmp_gt_u32 vcc, s52, v{vT[6]}')
    a('s_waitcnt lgkmcnt(0)')
    for i in range(8):
        a(f'ds_read_b128 {vr(vAcc+4*i,4)}, v{ra} offset:{4*i*ERS}')
    a('s_and_saveexec_b64 s[50:51], vcc')
    for i in range(8):
        a(f's_waitcnt lgkmcnt({7-i})')
        a(f'buffer_store_dwordx4 {vr(vAcc+4*i,4)}, v{ga}, s[16:19], s45 offen')
        a(f's_add_u32 s45, s45, {4*1792}')
    a('s_mov_b64 exec, -1')
    a('s_cmp_lt_u32 s41, 4')
    a(f's_cbranch_scc1 {END}')
    xhalf(a, sm, u0, u1, 'v_add_f32', sm)
    xhalf(a, sq, u0, u1, 'v_add_f32', sq)
    a(f'v_and_b32 v{u0}, 31, v{vLane}')
    a(f'v_lshlrev_b32 v{u0}, 3, v{u0}')
    a('s_and_b32 s47, s23, 3')
    a('s_lshl_b32 s47, s47, 8')
    a('s_add_u32 s47, s47, 81920')
    a(f'v_add_u32 v{u0}, s47, v{u0}')
    a(f'v_mov_b32 v{vU+8}, v{sm}')
    a(f'v_mov_b32 v{vU+9}, v{sq}')
    lw = a.newlab('k1st')
    a('s_cmp_lt_u32 s23, 4')
    a(f's_cbranch_scc1 {lw}')
    a(f'ds_write_b64 v{u0}, {vr(vU+8,2)}')
    a('s_waitcnt lgkmcnt(0)')
    a.lab(lw)
    a('s_barrier')
    a('s_cmp_ge_u32 s23, 4')
    a(f's_cbranch_scc1 {END}')
    a(f'ds_read_b64 {vr(vU+8,2)}, v{u0}')
    a('s_waitcnt lgkmcnt(0)')
    a(f'v_add_f32 v{sm}, v{sm}, v{vU+8}')
    a(f'v_add_f32 v{sq}, v{sq}, v{vU+9}')
    a('s_mov_b64 exec, 0xffffffff')
    a(f'buffer_store_dword v{sm}, v{staddr}, s[16:19], s46 offen')
    a(f's_add_u32 s46, s46, 8192')
    a(f'buffer_store_dword v{sq}, v{staddr}, s[16:19], s46 offen')
    a.lab(END)
    a('s_mov_b64 exec, -1')
    stamp(a, 3)
    stamp_flush(a, 8, 0, vE)
    a.lab(END + '_x')
    a('s_endpgm')
    return name, R.hi, K1_LDS

def gen_k2(a):
    name = 'k2_mix_kernel'
    header(a, name)
    END = 'k2_end'; KV = 'k2_kv'
    A_RS = 192
    A_BUF = 64*A_RS; B_BUF = 16384
    L_A = 16384
    L_B = L_A + 3*A_BUF
    SLAB = 128*272
    LDS = max(L_B + 4*B_BUF, 4*SLAB, 8*16384)
    NBLK = 32
    a('s_cmp_ge_u32 s2, 240')
    a(f's_cbranch_scc1 {END}_x')
    a('s_load_dwordx4 s[24:27], s[0:1], 48')
    a('s_load_dwordx2 s[32:33], s[0:1], 88')
    a('s_load_dwordx2 s[54:55], s[0:1], 24')
    a('s_load_dwordx2 s[56:57], s[0:1], 64')
    stamp(a, 0); stamp(a, 1); stamp(a, 2)
    R = Regs(1)
    vLane = R.alloc()
    vT = [R.alloc() for _ in range(10)]
    vAg = R.alloc(); vAl = R.alloc(); vSt = R.alloc()
    vBg = [R.alloc(), R.alloc()]
    vAad = R.alloc(); vBad = R.alloc()
    vStg = [R.alloc(4, 4) for _ in range(4)]
    vMR = [R.alloc(2, 2) for _ in range(2)]
    vAcc = R.alloc(64, 4)
    vFr = [R.alloc(16, 4), R.alloc(16, 4)]
    vE = R.alloc(40, 4)
    a(f'v_and_b32 v{vLane}, 63, v0')
    a(f'v_lshrrev_b32 v{vT[0]}, 6, v0')
    a('s_nop 0')
    a(f'v_readfirstlane_b32 s23, v{vT[0]}')
    a('s_and_b32 s20, s2, 7')
    a('s_lshl_b32 s20, s20, 1')
    a('s_lshr_b32 s21, s2, 3')
    a('s_and_b32 s34, s21, 1')
    a('s_add_u32 s20, s20, s34')
    a('s_lshr_b32 s21, s2, 4')
    sl = vT[0]; c = vT[1]
    a(f'v_lshrrev_b32 v{sl}, 3, v0')
    a(f'v_and_b32 v{c}, 7, v0')
    a(f'v_lshlrev_b32 v{c}, 4, v{c}')
    a(f'v_mul_u32_u24 v{vAg}, 1792, v{sl}')
    a(f'v_add_u32 v{vAg}, v{vAg}, v{c}')
    a('s_lshl_b32 s34, s21, 7')
    a(f's_add_u32 s34, s34, {WS_Z2}')
    a(f'v_add_u32 v{vAg}, s34, v{vAg}')
    a(f'v_mul_u32_u24 v{vAl}, {A_RS}, v{sl}')
    a(f'v_add_u32 v{vAl}, v{vAl}, v{c}')
    a(f'v_add_u32 v{vAl}, {L_A}, v{vAl}')
    a(f'v_lshlrev_b32 v{vSt}, 3, v{sl}')
    a('s_lshl_b32 s34, s20, 19')
    a('s_lshl_b32 s35, s23, 16')
    a('s_add_u32 s34, s34, s35')
    a(f'v_lshrrev_b32 v{vT[2]}, 3, v{vLane}')
    a(f'v_lshrrev_b32 v{vT[3]}, 4, v{vLane}')
    a(f'v_and_b32 v{vT[4]}, 7, v{vLane}')
    for j in range(2):
        a(f'v_add_u32 v{vT[5]}, {4*j}, v{vT[3]}')
        a(f'v_and_b32 v{vT[5]}, 7, v{vT[5]}')
        a(f'v_xor_b32 v{vT[5]}, v{vT[5]}, v{vT[4]}')
        a(f'v_add_u32 v{vT[6]}, {8*j}, v{vT[2]}')
        a(f'v_lshlrev_b32 v{vBg[j]}, 12, v{vT[6]}')
        a(f'v_lshl_add_u32 v{vBg[j]}, v{vT[5]}, 4, v{vBg[j]}')
        a(f'v_add_u32 v{vBg[j]}, s34, v{vBg[j]}')
    a('s_lshl_b32 s35, s23, 11')
    a(f's_add_u32 s35, s35, {L_B}')
    a(f'v_lshlrev_b32 v{vT[2]}, 4, v0')
    a('s_waitcnt lgkmcnt(0)')
    srd(a, 4, 24, 25, S*S*2)
    srd(a, 8, 26, 27, S*2)
    srd(a, 16, 32, 33, WS_SIZE)
    a('s_cmp_ge_u32 s2, 224')
    a(f's_cbranch_scc1 {KV}')
    sbuf = vAcc
    for j in range(8):
        a(f's_mov_b32 s38, {WS_ST + j*8192}')
        a(f'buffer_load_dwordx4 {vr(sbuf+4*j,4)}, v{vT[2]}, s[16:19], s38 offen')
    def issue(blk):
        a(f's_mov_b32 s36, {blk*64*1792}')
        a(f's_mov_b32 s37, {blk*128}')
        a(f'buffer_load_dwordx4 {vr(vStg[blk%4],4)}, v{vAg}, s[16:19], s36 offen')
        for j in range(2):
            a(f's_add_u32 m0, s35, {(blk%4)*B_BUF + j*1024}')
            a('s_nop 0')
            a(f'buffer_load_dwordx4 v{vBg[j]}, s[4:7], s37 offen lds')
    for b in range(4):
        issue(b)
    tr_addr(a, vAad, vLane, A_RS, vT[3:7])
    a('s_lshr_b32 s40, s23, 1')
    a(f's_mul_i32 s41, s40, {16*A_RS}')
    a(f's_add_u32 s41, s41, {L_A}')
    a(f'v_add_u32 v{vAad}, s41, v{vAad}')
    a(f'v_and_b32 v{vT[3]}, 31, v{vLane}')
    a(f'v_lshrrev_b32 v{vT[4]}, 5, v{vLane}')
    a('s_lshl_b32 s41, s40, 1')
    a(f'v_add_u32 v{vT[4]}, s41, v{vT[4]}')
    a(f'v_bfe_u32 v{vT[5]}, v{vT[3]}, 1, 3')
    a(f'v_xor_b32 v{vT[4]}, v{vT[4]}, v{vT[5]}')
    a(f'v_lshlrev_b32 v{vBad}, 7, v{vT[3]}')
    a(f'v_lshl_add_u32 v{vBad}, v{vT[4]}, 4, v{vBad}')
    a('s_and_b32 s41, s23, 1')
    a('s_lshl_b32 s41, s41, 13')
    a(f's_add_u32 s41, s41, {L_B}')
    a(f'v_add_u32 v{vBad}, s41, v{vBad}')
    a('s_waitcnt vmcnt(12)')
    for tk in range(4):
        sm = vE + 2*tk + 1; sq = vE + 2*tk
        a(f'v_add_f32 v{sm}, v{sbuf+tk}, v{sbuf+8+tk}')
        a(f'v_add_f32 v{sq}, v{sbuf+4+tk}, v{sbuf+12+tk}')
        for j in range(2, 4):
            a(f'v_add_f32 v{sm}, v{sm}, v{sbuf+8*j+tk}')
            a(f'v_add_f32 v{sq}, v{sq}, v{sbuf+8*j+4+tk}')
        ln_finish(a, sm, sq, 896.0)
    a(f'v_lshlrev_b32 v{vT[3]}, 5, v0')
    a(f'ds_write_b128 v{vT[3]}, {vr(vE,4)}')
    a(f'ds_write_b128 v{vT[3]}, {vr(vE+4,4)} offset:16')
    for i in range(64):
        a(f'v_mov_b32 v{vAcc+i}, 0')
    a('s_waitcnt lgkmcnt(0)')
    a('s_barrier')

    def transform(blk, j0, j1):
        x = vStg[blk % 4]; mr = vMR[blk % 2]
        t0 = vT[5]; t1 = vT[6]
        for j in range(j0, j1):
            a(f'v_lshlrev_b32 v{t0}, 16, v{x+j}')
            a(f'v_and_b32 v{t1}, 0xffff0000, v{x+j}')
            a(f'v_fma_f32 v{t0}, v{t0}, v{mr}, -v{mr+1}')
            a(f'v_fma_f32 v{t1}, v{t1}, v{mr}, -v{mr+1}')
            a(f'v_cvt_pk_bf16_f32 v{x+j}, v{t0}, v{t1}')
    def awrite(blk):
        a(f'ds_write_b128 v{vAl}, {vr(vStg[blk%4],4)} offset:{(blk%3)*A_BUF}')
    def mr_read(blk):
        a(f'ds_read_b64 {vr(vMR[blk%2],2)}, v{vSt} offset:{512*blk}')
    def frag_read(blk):
        F = vFr[blk % 2]
        for i in range(2):
            for half in range(2):
                a(f'ds_read_b64_tr_b16 {vr(F+4*i+2*half,2)}, v{vAad} offset:{(blk%3)*A_BUF + 4*half*A_RS + 64*i}')
        for i in range(2):
            a(f'ds_read_b128 {vr(F+8+4*i,4)}, v{vBad} offset:{(blk%4)*B_BUF + 4096*i}')

    mr_read(0); mr_read(1)
    a('s_waitcnt vmcnt(6) lgkmcnt(0)')
    transform(0, 0, 4); awrite(0)
    transform(1, 0, 4); awrite(1)
    mr_read(2)
    a('s_waitcnt lgkmcnt(0)')
    a('s_barrier')
    frag_read(0)
    stamp(a, 1)
    for i in range(NBLK):
        F = vFr[i % 2]
        if i + 4 < NBLK:
            issue(i + 4)
        if i + 1 < NBLK:
            a('s_waitcnt lgkmcnt(0)')
            frag_read(i + 1)
        else:
            a('s_waitcnt lgkmcnt(0)')
        nout = 3 * sum(1 for b in (i+3, i+4) if b < NBLK)
        def mf(t):
            ii, jb = t // 2, t % 2
            a(f'v_mfma_f32_32x32x16_bf16 {vr(vAcc+16*t,16)}, {vr(F+4*ii,4)}, {vr(F+8+4*jb,4)}, {vr(vAcc+16*t,16)}')
        mf(0)
        if i + 2 < NBLK:
            a(f's_waitcnt vmcnt({nout})')
            transform(i + 2, 0, 2)
        mf(1)
        if i + 2 < NBLK:
            transform(i + 2, 2, 4)
        mf(2)
        if i + 2 < NBLK:
            awrite(i + 2)
            if i + 3 < NBLK:
                mr_read(i + 3)
        mf(3)
        if i + 1 < NBLK:
            a('s_waitcnt lgkmcnt(0)')
            a('s_barrier')
    stamp(a, 2)
    za = [vT[1], vT[2]]; ba = vT[3]
    a(f'v_lshrrev_b32 v{vT[4]}, 3, v0')
    a(f'v_and_b32 v{vT[5]}, 7, v0')
    a('s_lshl_b32 s40, s20, 7')
    a(f'v_add_u32 v{vT[6]}, s40, v{vT[4]}')
    a(f'v_lshlrev_b32 v{ba}, 1, v{vT[6]}')
    a(f'v_mul_u32_u24 v{za[0]}, 1792, v{vT[6]}')
    a(f'v_lshl_add_u32 v{za[0]}, v{vT[5]}, 4, v{za[0]}')
    a(f'v_add_u32 v{za[1]}, {64*1792}, v{za[0]}')
    a('s_lshl_b32 s41, s21, 7')
    a(f's_add_u32 s42, s41, {WS_Z1}')
    a(f's_add_u32 s43, s41, {WS_U}')
    z1 = vStg[0]; bb = vStg[2]
    for j in range(2):
        a(f'buffer_load_dwordx4 {vr(z1+4*j,4)}, v{za[j]}, s[16:19], s42 offen')
        a(f'buffer_load_ushort v{bb+j}, v{ba}, s[8:11], 0 offen offset:{128*j}')
    srd(a, 60, 54, 55, D*D*2)
    srd(a, 76, 56, 57, FH*D*2)
    a(f'v_lshlrev_b32 v{vT[9]}, 4, v0')
    a('s_lshr_b32 s38, s2, 3')
    a('s_lshl_b32 s38, s38, 13')
    for m in range(2):
        a(f'buffer_load_dwordx4 {vr(vE+32,4)}, v{vT[9]}, s[60:63], s38 offen')
        a(f's_add_u32 s38, s38, {28*8192}')
    a('s_lshr_b32 s38, s2, 3')
    a('s_lshl_b32 s38, s38, 13')
    for m in range(4):
        a(f'buffer_load_dwordx4 {vr(vE+32,4)}, v{vT[9]}, s[76:79], s38 offen')
        a(f's_add_u32 s38, s38, {28*8192}')
    wa = vT[7]; ra = vT[8]
    a(f'v_and_b32 v{vT[9]}, 31, v{vLane}')
    a(f'v_mul_u32_u24 v{wa}, 272, v{vT[9]}')
    a(f'v_lshrrev_b32 v{vT[9]}, 5, v{vLane}')
    a(f'v_lshl_add_u32 v{wa}, v{vT[9]}, 4, v{wa}')
    a('s_lshr_b32 s40, s23, 1')
    a(f's_mul_i32 s40, s40, {SLAB}')
    a('s_and_b32 s41, s23, 1')
    a(f's_mul_i32 s41, s41, {64*272}')
    a('s_add_u32 s40, s40, s41')
    a(f'v_add_u32 v{wa}, s40, v{wa}')
    a(f'v_mul_u32_u24 v{ra}, 272, v{vT[4]}')
    a(f'v_lshl_add_u32 v{ra}, v{vT[5]}, 5, v{ra}')
    a('s_barrier')
    for ii in range(2):
        for jb in range(2):
            for q in range(4):
                a(f'ds_write_b128 v{wa}, {vr(vAcc+16*(2*ii+jb)+4*q,4)} offset:{jb*32*272 + (32*ii+8*q)*4}')
    a('s_waitcnt lgkmcnt(0)')
    a('s_barrier')
    for j in range(2):
        for kg in range(4):
            for h2 in range(2):
                off = kg*SLAB + j*64*272 + h2*16
                if off < 65536:
                    a(f'ds_read_b128 {vr(vAcc+32*j+8*kg+4*h2,4)}, v{ra} offset:{off}')
                else:
                    a(f'v_add_u32 v{vT[9]}, {off}, v{ra}')
                    a(f'ds_read_b128 {vr(vAcc+32*j+8*kg+4*h2,4)}, v{vT[9]}')
    a('s_waitcnt vmcnt(6) lgkmcnt(0)')
    t0 = vT[5]; t1 = vT[6]; t2 = vT[9]
    for j in range(2):
        g = vAcc + 32*j
        for kg in range(1, 4):
            for e in range(8):
                a(f'v_add_f32 v{g+e}, v{g+e}, v{g+8*kg+e}')
        a(f'v_lshlrev_b32 v{bb+j}, 16, v{bb+j}')
        for e in range(4):
            a(f'v_cvt_pk_bf16_f32 v{t2}, v{g+2*e}, v{g+2*e+1}')
            a(f'v_lshlrev_b32 v{t0}, 16, v{t2}')
            a(f'v_and_b32 v{t1}, 0xffff0000, v{t2}')
            a(f'v_add_f32 v{t0}, v{t0}, v{bb+j}')
            a(f'v_add_f32 v{t1}, v{t1}, v{bb+j}')
            a(f'v_cvt_pk_bf16_f32 v{t2}, v{t0}, v{t1}')
            a(f'v_lshlrev_b32 v{t0}, 16, v{t2}')
            a(f'v_and_b32 v{t1}, 0xffff0000, v{t2}')
            zz = z1 + 4*j + e
            a(f'v_lshlrev_b32 v{t2}, 16, v{zz}')
            a(f'v_and_b32 v{zz}, 0xffff0000, v{zz}')
            a(f'v_mul_f32 v{t0}, v{t0}, v{t2}')
            a(f'v_mul_f32 v{t1}, v{t1}, v{zz}')
            a(f'v_cvt_pk_bf16_f32 v{zz}, v{t0}, v{t1}')
        a(f'buffer_store_dwordx4 {vr(z1+4*j,4)}, v{za[j]}, s[16:19], s43 offen')
    a(f's_branch {END}')

    a.lab(KV)
    a('s_sub_u32 s20, s2, 224')
    PRS = 192
    vFrK = vFr[0]
    pg = vT[3]; pl = vT[4]; vg = vT[5]; vl = vT[6]
    a(f'v_lshrrev_b32 v{vT[0]}, 3, v{vLane}')
    a(f'v_and_b32 v{vT[1]}, 7, v{vLane}')
    a(f'v_lshlrev_b32 v{pg}, 11, v{vT[0]}')
    a(f'v_lshl_add_u32 v{pg}, v{vT[1]}, 4, v{pg}')
    a(f'v_mul_u32_u24 v{pl}, {PRS}, v{vT[0]}')
    a(f'v_lshl_add_u32 v{pl}, v{vT[1]}, 4, v{pl}')
    a('s_lshl_b32 s40, s23, 14')
    a(f'v_add_u32 v{pl}, s40, v{pl}')
    a(f'v_mul_u32_u24 v{vg}, 896, v{vT[0]}')
    a(f'v_lshl_add_u32 v{vg}, v{vT[1]}, 3, v{vg}')
    a(f'v_lshlrev_b32 v{vl}, 6, v{vT[0]}')
    a(f'v_lshl_add_u32 v{vl}, v{vT[1]}, 3, v{vl}')
    a(f'v_add_u32 v{vl}, s40, v{vl}')
    a(f'v_add_u32 v{vl}, {64*PRS}, v{vl}')
    a(f'v_cmp_eq_u32 s[44:45], 7, v{vT[1]}')
    a('s_lshl_b32 s41, s23, 19')
    a('s_lshl_b32 s42, s20, 7')
    a('s_add_u32 s41, s41, s42')
    a(f's_add_u32 s41, s41, {WS_PHIK}')
    a(f's_mul_i32 s42, s23, {256*896}')
    a('s_mul_i32 s43, s20, 56')
    a('s_add_u32 s42, s42, s43')
    a(f's_add_u32 s42, s42, {WS_V}')
    fa = vT[8]; fb = vT[9]
    tr_addr(a, fb, vLane, PRS, [vE, vE+1, vE+2, vE+3])
    a(f'v_add_u32 v{fb}, s40, v{fb}')
    tr_addr(a, fa, vLane, 64, [vE, vE+1, vE+2, vE+3])
    a(f'v_add_u32 v{fa}, s40, v{fa}')
    a(f'v_add_u32 v{fa}, {64*PRS}, v{fa}')
    for i in range(32):
        a(f'v_mov_b32 v{vAcc+i}, 0')
    one = vE + 36
    a(f'v_mov_b32 v{one}, 0x00003f80')
    pbuf = vAcc + 32
    vbuf = vFr[1]
    def kv_issue(ch):
        for i in range(8):
            a(f's_add_u32 s46, s41, {(ch*64 + 8*i)*2048}')
            a(f'buffer_load_dwordx4 {vr(pbuf+4*i,4)}, v{pg}, s[16:19], s46 offen')
        for i in range(8):
            a(f's_add_u32 s46, s42, {(ch*64 + 8*i)*896}')
            a(f'buffer_load_dwordx2 {vr(vbuf+2*i,2)}, v{vg}, s[16:19], s46 offen')
    kv_issue(0)
    for ch in range(4):
        a('s_waitcnt vmcnt(0)')
        for i in range(8):
            a(f'ds_write_b128 v{pl}, {vr(pbuf+4*i,4)} offset:{8*i*PRS}')
        for i in range(8):
            a(f'v_cndmask_b32 v{vbuf+2*i}, v{vbuf+2*i}, v{one}, s[44:45]')
            a(f'v_cndmask_b32 v{vbuf+2*i+1}, v{vbuf+2*i+1}, 0, s[44:45]')
            a(f'ds_write_b64 v{vl}, {vr(vbuf+2*i,2)} offset:{8*i*64}')
        a('s_waitcnt lgkmcnt(0)')
        if ch < 3:
            kv_issue(ch + 1)
        for ks in range(4):
            for half in range(2):
                a(f'ds_read_b64_tr_b16 {vr(vFrK+2*half,2)}, v{fa} offset:{(16*ks+4*half)*64}')
                a(f'ds_read_b64_tr_b16 {vr(vFrK+4+2*half,2)}, v{fb} offset:{(16*ks+4*half)*PRS}')
                a(f'ds_read_b64_tr_b16 {vr(vFrK+8+2*half,2)}, v{fb} offset:{(16*ks+4*half)*PRS + 64}')
            a('s_waitcnt lgkmcnt(0)')
            a(f'v_mfma_f32_32x32x16_bf16 {vr(vAcc,16)}, {vr(vFrK,4)}, {vr(vFrK+4,4)}, {vr(vAcc,16)}')
            a(f'v_mfma_f32_32x32x16_bf16 {vr(vAcc+16,16)}, {vr(vFrK,4)}, {vr(vFrK+8,4)}, {vr(vAcc+16,16)}')
    a.nop(16)
    a('s_barrier')
    tl = vT[0]; hh = vT[1]; bad = vT[3]
    a(f'v_and_b32 v{tl}, 31, v{vLane}')
    a(f'v_lshrrev_b32 v{hh}, 5, v{vLane}')
    a(f'v_lshlrev_b32 v{bad}, 2, v{tl}')
    a(f'v_lshl_add_u32 v{bad}, v{hh}, 10, v{bad}')
    a('s_lshl_b32 s40, s23, 13')
    a(f'v_add_u32 v{bad}, s40, v{bad}')
    for nt in range(2):
        for q in range(4):
            for i in range(4):
                a(f'ds_write_b32 v{bad}, v{vAcc+16*nt+4*q+i} offset:{(8*q+i)*256 + nt*128}')
    a('s_waitcnt lgkmcnt(0)')
    a('s_barrier')
    a(f'v_lshlrev_b32 v{bad}, 4, v0')
    for w in range(8):
        a(f'ds_read_b128 {vr(vE+4*w,4)}, v{bad} offset:{8192*w}')
    a('s_waitcnt lgkmcnt(0)')
    for w in range(1, 8):
        for j in range(4):
            a(f'v_add_f32 v{vE+j}, v{vE+j}, v{vE+4*w+j}')
    a(f'v_cvt_pk_bf16_f32 v{vE}, v{vE}, v{vE+1}')
    a(f'v_cvt_pk_bf16_f32 v{vE+1}, v{vE+2}, v{vE+3}')
    a(f'v_bfe_u32 v{vT[4]}, v0, 2, 2')
    a(f'v_bfe_u32 v{vT[5]}, v0, 1, 1')
    a(f'v_and_b32 v{vT[6]}, 1, v0')
    a(f'v_lshrrev_b32 v{vT[7]}, 4, v0')
    a(f'v_lshl_add_u32 v{vT[7]}, v{vT[5]}, 5, v{vT[7]}')
    a(f'v_lshlrev_b32 v{bad}, 4, v{vT[7]}')
    a(f'v_lshl_add_u32 v{bad}, v{vT[4]}, 10, v{bad}')
    a(f'v_lshl_add_u32 v{bad}, v{vT[6]}, 3, v{bad}')
    a('s_lshl_b32 s40, s20, 12')
    a(f's_add_u32 s40, s40, {WS_KVT}')
    a(f'buffer_store_dwordx2 {vr(vE,2)}, v{bad}, s[16:19], s40 offen')
    a.lab(END)
    stamp(a, 3)
    stamp_flush(a, 4, 1, vE)
    a.lab(END + '_x')
    a('s_endpgm')
    return name, R.hi, LDS

def gen_k3(a):
    name = 'k3_out_kernel'
    header(a, name)
    END = 'k3_end'
    O_RS = 912
    L_PH = 64*O_RS
    L_W = L_PH + 32768
    SLAB = 64*272
    LDS = L_W + 4*8192
    NB = 21
    a('s_cmp_ge_u32 s2, 224')
    a(f's_cbranch_scc1 {END}_x')
    a('s_load_dwordx2 s[24:25], s[0:1], 0')
    a('s_load_dwordx2 s[26:27], s[0:1], 24')
    a('s_load_dwordx4 s[28:31], s[0:1], 64')
    a('s_load_dwordx2 s[32:33], s[0:1], 88')
    stamp(a, 0)
    R = Regs(1)
    vLane = R.alloc()
    vT = [R.alloc() for _ in range(10)]
    vWg = R.alloc(); vUg = R.alloc()
    vAad = [R.alloc(), R.alloc()]; vBo = R.alloc(); vBu = R.alloc()
    vAcc = R.alloc(32, 4)
    vFr = R.alloc(12, 4)
    vE = R.alloc(96, 4)
    a(f'v_and_b32 v{vLane}, 63, v0')
    a(f'v_lshrrev_b32 v{vT[0]}, 6, v0')
    a('s_nop 0')
    a(f'v_readfirstlane_b32 s23, v{vT[0]}')
    a('s_and_b32 s20, s2, 7')
    a('s_lshl_b32 s20, s20, 2')
    a('s_lshr_b32 s21, s2, 3')
    a('s_and_b32 s34, s21, 3')
    a('s_add_u32 s20, s20, s34')
    a('s_lshr_b32 s21, s2, 5')
    l3 = vT[0]; l4 = vT[1]; l7 = vT[2]
    a(f'v_lshrrev_b32 v{l3}, 3, v{vLane}')
    a(f'v_lshrrev_b32 v{l4}, 4, v{vLane}')
    a(f'v_and_b32 v{l7}, 7, v{vLane}')
    tl = vT[3]; hh = vT[4]; ka = vT[5]
    a(f'v_and_b32 v{tl}, 31, v{vLane}')
    a(f'v_lshrrev_b32 v{hh}, 5, v{vLane}')
    a(f'v_lshlrev_b32 v{ka}, 4, v{vLane}')
    a('s_lshl_b32 s41, s20, 17')
    a('s_lshl_b32 s42, s23, 13')
    a('s_add_u32 s41, s41, s42')
    a(f's_add_u32 s41, s41, {WS_PHIQ}')
    a(f's_add_u32 s40, s42, {WS_KVT}')
    a('s_waitcnt lgkmcnt(0)')
    stamp(a, 4)
    srd(a, 16, 32, 33, WS_SIZE)
    for ah in range(2):
        base = vE + 48*ah
        for ks in range(4):
            a(f's_add_u32 s46, s40, {ah*4096 + ks*1024}')
            a(f'buffer_load_dwordx4 {vr(base+4*ks,4)}, v{ka}, s[16:19], s46 offen')
        for tt in range(2):
            for ks in range(4):
                a(f's_add_u32 s46, s41, {tt*65536 + ah*4096 + ks*1024}')
                a(f'buffer_load_dwordx4 {vr(base+16+16*tt+4*ks,4)}, v{ka}, s[16:19], s46 offen')
    srd(a, 4, 24, 25, S*D*2)
    srd(a, 8, 26, 27, D*D*2)
    srd(a, 12, 28, 29, FH*D*2)
    srd(a, 48, 30, 31, S*D*2)
    a(f'v_and_b32 v{vT[6]}, 1, v{l4}')
    a(f'v_lshlrev_b32 v{vT[6]}, 2, v{vT[6]}')
    a(f'v_xor_b32 v{vT[6]}, v{vT[6]}, v{l7}')
    a('s_lshl_b32 s34, s23, 3')
    a(f'v_add_u32 v{vT[7]}, s34, v{l3}')
    a(f'v_mul_u32_u24 v{vWg}, 896, v{vT[7]}')
    a(f'v_lshl_add_u32 v{vWg}, v{vT[6]}, 4, v{vWg}')
    a('s_lshl_b32 s34, s21, 7')
    a(f'v_add_u32 v{vWg}, s34, v{vWg}')
    a('s_lshl_b32 s34, s23, 2')
    a(f'v_add_u32 v{vT[6]}, s34, v{l4}')
    a(f'v_and_b32 v{vT[6]}, 7, v{vT[6]}')
    a(f'v_xor_b32 v{vT[6]}, v{vT[6]}, v{l7}')
    a(f'v_mul_u32_u24 v{vUg}, 1792, v{vT[7]}')
    a(f'v_lshl_add_u32 v{vUg}, v{vT[6]}, 4, v{vUg}')
    a(f's_mul_i32 s34, s20, {64*1792}')
    a(f's_add_u32 s34, s34, {WS_U}')
    a(f'v_add_u32 v{vUg}, s34, v{vUg}')
    a('s_lshl_b32 s47, s23, 10')
    def w_dma(blk):
        a(f's_add_u32 m0, s47, {L_W + (blk%4)*8192}')
        if blk < 7:
            a(f's_mov_b32 s36, {blk*64*896}')
            a(f'buffer_load_dwordx4 v{vWg}, s[8:11], s36 offen lds')
        else:
            a(f's_mov_b32 s36, {(blk-7)*64*896}')
            a(f'buffer_load_dwordx4 v{vWg}, s[12:15], s36 offen lds')
    def u_dma(blk):
        a(f's_add_u32 m0, s47, {L_PH + (blk%4)*8192}')
        a(f's_mov_b32 s36, {(blk-7)*128}')
        a(f'buffer_load_dwordx4 v{vUg}, s[16:19], s36 offen lds')
    for b in range(3):
        w_dma(b)
    oa = vT[8]
    a(f'v_mul_u32_u24 v{oa}, {O_RS}, v{tl}')
    a(f'v_lshl_add_u32 v{oa}, v{hh}, 3, v{oa}')
    a('s_mul_i32 s43, s23, 112')
    a(f'v_add_u32 v{oa}, s43, v{oa}')
    d0 = vT[5]; d1 = vT[6]; dn = vT[7]
    for ah in range(2):
        base = vE + 48*ah
        if ah == 0: stamp(a, 5)
        a(f's_waitcnt vmcnt({15 if ah == 0 else 3})')
        stamp(a, 6 + ah)
        for tt in range(2):
            for ks in range(4):
                cc_ = '0' if ks == 0 else vr(vAcc+16*tt, 16)
                a(f'v_mfma_f32_32x32x16_bf16 {vr(vAcc+16*tt,16)}, {vr(base+4*ks,4)}, {vr(base+16+16*tt+4*ks,4)}, {cc_}')
        a.nop(12)
        for tt in range(2):
            acc = vAcc + 16*tt
            a(f'v_mov_b32 v{d0}, v{acc+12}')
            a(f'v_mov_b32 v{d1}, v{acc+12}')
            a('s_nop 1')
            a(f'v_permlane32_swap_b32 v{d0}, v{d1}')
            a('s_nop 1')
            bf16_round(a, dn, d1)
            a(f'v_add_f32 v{dn}, {f2u(1e-6)}, v{dn}')
            bf16_round(a, dn, dn)
            a(f'v_rcp_f32 v{dn}, v{dn}')
            for j in range(8):
                a(f'v_cvt_pk_bf16_f32 v{d0}, v{acc+2*j}, v{acc+2*j+1}')
                a(f'v_lshlrev_b32 v{acc+2*j}, 16, v{d0}')
                a(f'v_and_b32 v{acc+2*j+1}, 0xffff0000, v{d0}')
            for j in range(16):
                a(f'v_mul_f32 v{acc+j}, v{acc+j}, v{dn}')
            for j in range(8):
                a(f'v_cvt_pk_bf16_f32 v{acc+j}, v{acc+2*j}, v{acc+2*j+1}')
            for q in range(4):
                if q == 3:
                    a('s_mov_b64 exec, 0xffffffff')
                a(f'ds_write_b64 v{oa}, {vr(acc+2*q,2)} offset:{tt*32*O_RS + ah*56 + q*16}')
                if q == 3:
                    a('s_mov_b64 exec, -1')
    G1, G2, rr, cc = vT[0], vT[1], vT[2], vT[3]
    a(f'v_bfe_u32 v{G1}, v{vLane}, 4, 1')
    a(f'v_lshrrev_b32 v{G2}, 5, v{vLane}')
    a(f'v_bfe_u32 v{rr}, v{vLane}, 2, 2')
    a(f'v_and_b32 v{cc}, 3, v{vLane}')
    a(f'v_lshl_add_u32 v{cc}, v{G1}, 2, v{cc}')
    a(f'v_lshrrev_b32 v{vT[4]}, 1, v{rr}')
    a(f'v_lshl_add_u32 v{rr}, v{G2}, 3, v{rr}')
    a(f'v_lshlrev_b32 v{rr}, 7, v{rr}')
    a(f'v_lshl_add_u32 v{rr}, v{cc}, 3, v{rr}')
    a('s_lshr_b32 s40, s23, 1')
    a('s_lshl_b32 s41, s40, 11')
    a(f's_add_u32 s41, s41, {L_W}')
    a(f'v_add_u32 v{rr}, s41, v{rr}')
    a(f'v_lshl_add_u32 v{vAad[0]}, v{vT[4]}, 6, v{rr}')
    a(f'v_xor_b32 v{vT[4]}, 1, v{vT[4]}')
    a(f'v_lshl_add_u32 v{vAad[1]}, v{vT[4]}, 6, v{rr}')
    a(f'v_and_b32 v{vT[4]}, 31, v{vLane}')
    a(f'v_lshrrev_b32 v{vT[5]}, 5, v{vLane}')
    a('s_and_b32 s41, s23, 1')
    a('s_lshl_b32 s41, s41, 5')
    a(f'v_add_u32 v{vT[4]}, s41, v{vT[4]}')
    a('s_lshl_b32 s42, s40, 5')
    a(f'v_mul_u32_u24 v{vBo}, {O_RS}, v{vT[4]}')
    a(f'v_lshl_add_u32 v{vBo}, v{vT[5]}, 4, v{vBo}')
    a(f'v_add_u32 v{vBo}, s42, v{vBo}')
    a('s_lshl_b32 s42, s40, 1')
    a(f'v_add_u32 v{vT[5]}, s42, v{vT[5]}')
    a(f'v_bfe_u32 v{vT[6]}, v{vT[4]}, 1, 3')
    a(f'v_xor_b32 v{vT[5]}, v{vT[5]}, v{vT[6]}')
    a(f'v_lshlrev_b32 v{vBu}, 7, v{vT[4]}')
    a(f'v_lshl_add_u32 v{vBu}, v{vT[5]}, 4, v{vBu}')
    a(f'v_add_u32 v{vBu}, {L_PH}, v{vBu}')
    for i in range(32):
        a(f'v_mov_b32 v{vAcc+i}, 0')
    xa = vT[9]; xv = vE
    a(f'v_lshrrev_b32 v{vT[4]}, 3, v0')
    a(f'v_and_b32 v{vT[5]}, 7, v0')
    a('s_lshl_b32 s41, s20, 6')
    a(f'v_add_u32 v{vT[6]}, s41, v{vT[4]}')
    a(f'v_mul_u32_u24 v{xa}, 896, v{vT[6]}')
    a(f'v_lshl_add_u32 v{xa}, v{vT[5]}, 4, v{xa}')
    a('s_lshl_b32 s52, s21, 7')
    a(f'buffer_load_dwordx4 {vr(xv,4)}, v{xa}, s[4:7], s52 offen')
    a('s_waitcnt lgkmcnt(0)')
    a('s_barrier')
    stamp(a, 1)
    ops = []
    ops += [('x', -1)]
    issued = [('w', 0), ('w', 1), ('w', 2), ('x', -1)]
    for blk in range(NB):
        nb = blk + 3
        if nb < NB:
            w_dma(nb); issued.append(('w', nb))
            if nb >= 7:
                u_dma(nb); issued.append(('u', nb))
        if blk == 0:
            later = len([1 for (k, b) in issued[issued.index(('w', 0))+1:]])
            a(f's_waitcnt vmcnt({later})')
            a('s_barrier')
        for i in range(2):
            for half in range(2):
                a(f'ds_read_b64_tr_b16 {vr(vFr+4*i+2*half,2)}, v{vAad[i]} offset:{(blk%4)*8192 + 4*half*128}')
        if blk < 7:
            a(f'ds_read_b128 {vr(vFr+8,4)}, v{vBo} offset:{blk*128}')
        else:
            a(f'ds_read_b128 {vr(vFr+8,4)}, v{vBu} offset:{(blk%4)*8192}')
        a('s_waitcnt lgkmcnt(0)')
        for i in range(2):
            a(f'v_mfma_f32_32x32x16_bf16 {vr(vAcc+16*i,16)}, {vr(vFr+4*i,4)}, {vr(vFr+8,4)}, {vr(vAcc+16*i,16)}')
        if blk + 1 < NB:
            last = max(idx for idx, (k, b) in enumerate(issued) if b == blk + 1)
            a(f's_waitcnt vmcnt({len(issued) - 1 - last})')
            a('s_barrier')
    stamp(a, 2)
    a.nop(8)
    a('s_barrier')
    wa = vT[0]; ra = vT[1]
    a(f'v_and_b32 v{vT[2]}, 31, v{vLane}')
    a(f'v_mul_u32_u24 v{wa}, 272, v{vT[2]}')
    a(f'v_lshrrev_b32 v{vT[2]}, 5, v{vLane}')
    a(f'v_lshl_add_u32 v{wa}, v{vT[2]}, 4, v{wa}')
    a(f's_mul_i32 s41, s40, {SLAB}')
    a('s_and_b32 s42, s23, 1')
    a(f's_mul_i32 s42, s42, {32*272}')
    a('s_add_u32 s41, s41, s42')
    a(f'v_add_u32 v{wa}, s41, v{wa}')
    for ii in range(2):
        for q in range(4):
            a(f'ds_write_b128 v{wa}, {vr(vAcc+16*ii+4*q,4)} offset:{(32*ii+8*q)*4}')
    a(f'v_mul_u32_u24 v{ra}, 272, v{vT[4]}')
    a(f'v_lshl_add_u32 v{ra}, v{vT[5]}, 5, v{ra}')
    a('s_waitcnt lgkmcnt(0)')
    a('s_barrier')
    g = vE + 8
    for kg in range(4):
        for h2 in range(2):
            a(f'ds_read_b128 {vr(g+8*kg+4*h2,4)}, v{ra} offset:{kg*SLAB + h2*16}')
    a('s_waitcnt vmcnt(0) lgkmcnt(0)')
    for kg in range(1, 4):
        for e in range(8):
            a(f'v_add_f32 v{g+e}, v{g+e}, v{g+8*kg+e}')
    t0 = vT[6]
    for e in range(4):
        xx = xv + e
        a(f'v_lshlrev_b32 v{t0}, 16, v{xx}')
        a(f'v_and_b32 v{xx}, 0xffff0000, v{xx}')
        a(f'v_add_f32 v{g+2*e}, v{g+2*e}, v{t0}')
        a(f'v_add_f32 v{g+2*e+1}, v{g+2*e+1}, v{xx}')
        a(f'v_cvt_pk_bf16_f32 v{xx}, v{g+2*e}, v{g+2*e+1}')
    a(f'buffer_store_dwordx4 {vr(xv,4)}, v{xa}, s[48:51], s52 offen')
    a.lab(END)
    stamp(a, 3)
    stamp_flush(a, 8, 2, vE)
    a.lab(END + '_x')
    a('s_endpgm')
    return name, R.hi, LDS

def main():
    a = Asm()
    SF = os.environ.get('STORE_FLAGS', '')
    infos = []
    infos.append(gen_k1(a) + (224,))
    infos.append(gen_k2(a) + (240,))
    infos.append(gen_k3(a) + (224,))
    out = []
    for n, nv, lds, g in infos:
        out.append(f'; @launch kernel={n} grid=({g},1,1) block=(512,1,1) lds={lds}')
    out.append('.amdgcn_target "amdgcn-amd-amdhsa--gfx950"')
    out.append('.text')
    for l in a.L:
        if SF and 'buffer_store' in l and 's[16:19]' in l:
            l = l + ' ' + SF
        out.append(l)
    out.append('.section .rodata,"a"')
    for n, nv, lds, g in infos:
        out.append('.p2align 6')
        out.append(descriptor(n, nv))
    open(sys.argv[1] if len(sys.argv) > 1 else 'parallel_sum__linear_kernel_hedgehog__mixer_gmlp__prompt.s', 'w').write('\n'.join(out) + '\n')
    for i in infos: print(i, file=sys.stderr)

main()
```

```python
import sys, struct, os

def f2u(x):
    return struct.unpack('<I', struct.pack('<f', x))[0]

class Asm:
    def __init__(s):
        s.L = []; s.uid = 0
    def __call__(s, t):
        s.L.append('    ' + t)
    def lab(s, l):
        s.L.append(l + ':')
    def newlab(s, p='L'):
        s.uid += 1
        return f'{p}_{s.uid}'
    def nop(s, n):
        while n > 0:
            k = min(n, 16)
            s(f's_nop {k-1}')
            n -= k

class Regs:
    def __init__(s, start=0):
        s.n = start; s.hi = start
    def alloc(s, n=1, align=1):
        s.n = (s.n + align - 1) // align * align
        r = s.n
        s.n += n
        s.hi = max(s.hi, s.n)
        return r

def vr(b, n=1):
    return f'v{b}' if n == 1 else f'v[{b}:{b+n-1}]'

S = 2048; D = 448; H = 16; DH = 28; FH = 896
WS_PHIQ = 0
WS_PHIK = WS_PHIQ + S*H*64*2
WS_V = WS_PHIK + S*H*64*2
WS_Z1 = WS_V + S*D*2 + 4096
WS_Z2 = WS_Z1 + S*FH*2
WS_U = WS_Z2 + S*FH*2
WS_ST = WS_U + S*FH*2
WS_KVT = WS_ST + S*8*2*4
WS_END = WS_KVT + H*32*64*2
WS_SIZE = 268435456

L2E = 1.4426950408889634
GELU_K = -2.0 * 0.7978845608028654 * L2E
OOB = 0x40000000

STAMP = bool(os.environ.get('STAMP'))
WS_STAMP = 200*1024*1024
def stamp(a, i):
    if STAMP:
        a(f's_memtime s[{64+2*i}:{65+2*i}]')
        a('s_waitcnt lgkmcnt(0)')
def stamp_flush(a, n, kidx, tmpv):
    if not STAMP: return
    a('s_mov_b64 exec, 1')
    a('s_lshl_b32 s60, s2, 3')
    a('s_add_u32 s60, s60, s23')
    a('s_lshl_b32 s60, s60, 6')
    a(f's_add_u32 s60, s60, {WS_STAMP + kidx*1024*1024}')
    a(f'v_mov_b32 v{tmpv+1}, 0')
    for i in range(n):
        a(f'v_mov_b32 v{tmpv}, s{64+2*i}')
        a(f'buffer_store_dword v{tmpv}, v{tmpv+1}, s[16:19], s60 offen offset:{4*i}')
        a('s_nop 1')
    a('s_mov_b64 exec, -1')

def srd(a, d, lo, hi, nbytes):
    a(f's_mov_b32 s{d}, s{lo}')
    a(f's_and_b32 s{d+1}, s{hi}, 0xffff')
    a(f's_mov_b32 s{d+2}, {nbytes}')
    a(f's_mov_b32 s{d+3}, 0x00020000')

def bf16_round(a, dst, src):
    a(f'v_cvt_pk_bf16_f32 v{dst}, v{src}, v{src}')
    a(f'v_lshlrev_b32 v{dst}, 16, v{dst}')

def xhalf(a, x, t0, t1, op, dst):
    a(f'v_mov_b32 v{t0}, v{x}')
    a(f'v_mov_b32 v{t1}, v{x}')
    a('s_nop 1')
    a(f'v_permlane32_swap_b32 v{t0}, v{t1}')
    a('s_nop 1')
    a(f'{op} v{dst}, v{t0}, v{t1}')

def ln_finish(a, sm, sq, n):
    inv = f2u(1.0/n)
    a(f'v_mul_f32 v{sm}, {inv}, v{sm}')
    a(f'v_mul_f32 v{sq}, {inv}, v{sq}')
    a(f'v_fma_f32 v{sq}, -v{sm}, v{sm}, v{sq}')
    a(f'v_max_f32 v{sq}, 0, v{sq}')
    bf16_round(a, sm, sm)
    bf16_round(a, sq, sq)
    a(f'v_add_f32 v{sq}, {f2u(1e-5)}, v{sq}')
    bf16_round(a, sq, sq)
    a(f'v_sqrt_f32 v{sq}, v{sq}')
    a('s_nop 0')
    bf16_round(a, sq, sq)
    a(f'v_rcp_f32 v{sq}, v{sq}')
    a('s_nop 0')
    a(f'v_mul_f32 v{sm}, v{sm}, v{sq}')

PRIO = os.environ.get('PRIO')
def prio(a):
    if PRIO:
        l = a.newlab('prio')
        a('s_cmp_lt_u32 s23, 4')
        a(f's_cbranch_scc1 {l}')
        a('s_setprio 1')
        a.lab(l)

def header(a, name):
    a.L.append('.p2align 8')
    a.L.append(f'.globl {name}')
    a.L.append(f'.type {name},@function')
    a.lab(name)

def descriptor(name, nv, ns=102):
    nv8 = (nv + 7) // 8 * 8
    return f""".amdhsa_kernel {name}
  .amdhsa_next_free_vgpr {nv8}
  .amdhsa_next_free_sgpr {ns}
  .amdhsa_accum_offset {nv8}
  .amdhsa_group_segment_fixed_size 0
  .amdhsa_kernarg_size 96
  .amdhsa_user_sgpr_count 2
  .amdhsa_user_sgpr_kernarg_segment_ptr 1
  .amdhsa_system_sgpr_workgroup_id_x 1
.end_amdhsa_kernel
"""

def tr_addr(a, dst, vLane, rs, T):
    G1, G2, rr, cc = T[0], T[1], T[2], T[3]
    a(f'v_bfe_u32 v{G1}, v{vLane}, 4, 1')
    a(f'v_lshrrev_b32 v{G2}, 5, v{vLane}')
    a(f'v_bfe_u32 v{rr}, v{vLane}, 2, 2')
    a(f'v_and_b32 v{cc}, 3, v{vLane}')
    a(f'v_lshl_add_u32 v{rr}, v{G2}, 3, v{rr}')
    a(f'v_mul_u32_u24 v{dst}, {rs}, v{rr}')
    a(f'v_lshl_add_u32 v{cc}, v{G1}, 2, v{cc}')
    a(f'v_lshl_add_u32 v{dst}, v{cc}, 3, v{dst}')

K1_WB = 14336
K1_W = 114688
K1_LDS = K1_W + 3*K1_WB

def gen_k1(a):
    name = 'k1_proj_kernel'
    header(a, name)
    END = 'k1_end'
    a('s_cmp_ge_u32 s2, 224')
    a(f's_cbranch_scc1 {END}_x')
    a('s_load_dwordx4 s[24:27], s[0:1], 0')
    a('s_load_dwordx2 s[28:29], s[0:1], 16')
    a('s_load_dwordx2 s[30:31], s[0:1], 40')
    a('s_load_dwordx2 s[32:33], s[0:1], 88')
    a('s_load_dwordx2 s[54:55], s[0:1], 48')
    stamp(a, 0)
    a('s_and_b32 s20, s2, 7')
    a('s_lshl_b32 s20, s20, 1')
    a('s_lshr_b32 s21, s2, 3')
    a('s_and_b32 s34, s21, 1')
    a('s_add_u32 s20, s20, s34')
    a('s_lshr_b32 s21, s2, 4')
    R = Regs(1)
    vLane = R.alloc()
    vT = [R.alloc() for _ in range(8)]
    vWg = [R.alloc(), R.alloc()]
    vAad = R.alloc(); vBad = [R.alloc() for _ in range(4)]
    vAcc = R.alloc(64, 4)
    vFr = R.alloc(40, 4)
    vPhi = R.alloc(16, 4)
    vE = R.alloc(48, 4)
    vU = R.alloc(48, 4)
    vXg = vFr
    a(f'v_and_b32 v{vLane}, 63, v0')
    a(f'v_lshrrev_b32 v{vT[0]}, 6, v0')
    a(f'v_lshlrev_b32 v{vT[1]}, 4, v0')
    a(f'v_readfirstlane_b32 s23, v{vT[0]}')
    a('s_mul_i32 s34, s23, 896')
    a(f'v_add_u32 v{vT[2]}, s34, v{vLane}')
    for j in range(14):
        pos = vT[3]; row = vT[4]; p = vT[5]; t6 = vT[6]
        a(f'v_add_u32 v{pos}, {64*j}, v{vT[2]}')
        a(f'v_mul_u32_u24 v{row}, 18725, v{pos}')
        a(f'v_lshrrev_b32 v{row}, 20, v{row}')
        a(f'v_lshrrev_b32 v{t6}, 1, v{row}')
        a(f'v_and_b32 v{t6}, 7, v{t6}')
        a(f'v_xor_b32 v{pos}, v{pos}, v{t6}') if False else None
        a(f'v_mul_u32_u24 v{p}, 56, v{row}')
        a(f'v_sub_u32 v{p}, v{pos}, v{p}')
        a(f'v_xor_b32 v{t6}, v{t6}, v{p}')
        a(f'v_and_b32 v{t6}, 7, v{t6}')
        a(f'v_and_b32 v{p}, 0xfffffff8, v{pos}') if False else None
        a(f'v_sub_u32 v{pos}, v{pos}, v{p}')
        a(f'v_and_b32 v{p}, 56, v{p}')
        a(f'v_add3_u32 v{pos}, v{pos}, v{p}, v{t6}')
        a(f'v_lshlrev_b32 v{vXg+j}, 4, v{pos}')
    a('s_mul_i32 s38, s20, 114688')
    a('s_mul_i32 s35, s23, 14336')
    a('s_waitcnt lgkmcnt(0)')
    stamp(a, 4)
    srd(a, 4, 24, 25, S*D*2)
    for j in range(14):
        a(f's_add_u32 m0, s35, {1024*j}')
        a('s_nop 0')
        a(f'buffer_load_dwordx4 v{vXg+j}, s[4:7], s38 offen lds')
    srd(a, 12, 28, 29, H*DH*DH*2)
    srd(a, 16, 32, 33, WS_SIZE)
    a('s_cmp_lt_u32 s21, 6')
    a('s_mov_b32 s22, 2688')
    a('s_cselect_b32 s22, s22, 3584')
    a('s_cselect_b32 s34, s26, s30')
    a('s_cselect_b32 s35, s27, s31')
    a(f's_mov_b32 s36, {D*3*D*2}')
    a(f's_cselect_b32 s36, s36, {D*4*D*2}')
    a('s_cselect_b32 s37, 0, 6')
    a('s_sub_u32 s37, s21, s37')
    a('s_mul_i32 s37, s37, 448')
    a('s_add_u32 s8, s34, s37')
    a('s_addc_u32 s9, s35, 0')
    a('s_and_b32 s9, s9, 0xffff')
    a('s_sub_u32 s10, s36, s37')
    a('s_mov_b32 s11, 0x00020000')
    a('s_lshl_b32 s34, s23, 7')
    a(f'v_add_u32 v{vT[2]}, s34, v{vLane}')
    for j in range(2):
        c = vT[3]; row = vT[4]; col = vT[5]
        a(f'v_add_u32 v{c}, {64*j}, v{vT[2]}')
        a(f'v_mul_u32_u24 v{row}, 2341, v{c}')
        a(f'v_lshrrev_b32 v{row}, 16, v{row}')
        a(f'v_mul_u32_u24 v{col}, 28, v{row}')
        a(f'v_sub_u32 v{col}, v{c}, v{col}')
        a(f'v_lshlrev_b32 v{col}, 4, v{col}')
        a(f'v_mul_lo_u32 v{vWg[j]}, v{row}, s22')
        a(f'v_add_u32 v{vWg[j]}, v{vWg[j]}, v{col}')
    a('s_lshl_b32 s48, s23, 11')
    a(f's_add_u32 s48, s48, {K1_W}')
    def w_dma(blk):
        lab = a.newlab('k1w')
        a('s_cmp_eq_u32 s23, 7')
        a(f's_cbranch_scc1 {lab}')
        a(f's_mul_i32 s38, s22, {32*blk}')
        for j in range(2):
            a(f's_add_u32 m0, s48, {(blk%3)*K1_WB + j*1024}')
            a('s_nop 0')
            a(f'buffer_load_dwordx4 v{vWg[j]}, s[8:11], s38 offen lds')
        a.lab(lab)
    w_dma(0)
    w_dma(1)
    a('s_and_b32 s39, s21, 1')
    a('s_mul_i32 s40, s39, 12544')
    vPl = vE
    a(f'v_add_u32 v{vT[2]}, 8192, v{vT[1]}')
    a(f'buffer_load_dwordx4 {vr(vPl,4)}, v{vT[1]}, s[12:15], s40 offen')
    a(f'v_mov_b32 v{vT[3]}, {OOB}')
    a('v_cmp_gt_u32 vcc, 272, v0')
    a('s_nop 1')
    a(f'v_cndmask_b32 v{vT[2]}, v{vT[3]}, v{vT[2]}, vcc')
    a(f'buffer_load_dwordx4 {vr(vPl+4,4)}, v{vT[2]}, s[12:15], s40 offen')
    tr_addr(a, vAad, vLane, 448, vT[2:6])
    a(f'v_add_u32 v{vAad}, {K1_W}, v{vAad}')
    a(f'v_and_b32 v{vT[2]}, 31, v{vLane}')
    a(f'v_lshrrev_b32 v{vT[3]}, 5, v{vLane}')
    a(f'v_bfe_u32 v{vT[4]}, v{vT[2]}, 1, 3')
    for m in range(4):
        a(f'v_add_u32 v{vT[5]}, {2*m}, v{vT[3]}')
        a(f'v_xor_b32 v{vT[5]}, v{vT[5]}, v{vT[4]}')
        a(f'v_mul_u32_u24 v{vBad[m]}, 896, v{vT[2]}')
        a(f'v_lshl_add_u32 v{vBad[m]}, v{vT[5]}, 4, v{vBad[m]}')
    stamp(a, 5)
    a('s_waitcnt vmcnt(0)')
    stamp(a, 6)
    a(f'v_add_u32 v{vT[2]}, {K1_W + 2*K1_WB}, v{vT[1]}')
    a(f'ds_write_b128 v{vT[2]}, {vr(vPl,4)}')
    a('v_cmp_gt_u32 vcc, 320, v0')
    a('s_and_saveexec_b64 s[50:51], vcc')
    a(f'ds_write_b128 v{vT[2]}, {vr(vPl+4,4)} offset:8192')
    a('s_mov_b64 exec, -1')
    stamp(a, 7)
    vX = vAcc
    row = vT[2]; qd = vT[3]; lo = vT[4]
    a(f'v_lshrrev_b32 v{row}, 2, v0')
    a(f'v_and_b32 v{qd}, 3, v0')
    a(f'v_mul_u32_u24 v{lo}, 896, v{row}')
    a(f'v_mul_u32_u24 v{qd}, 224, v{qd}')
    a(f'v_add_u32 v{lo}, v{lo}, v{qd}')
    for j in range(14):
        a(f'ds_read_b128 {vr(vX+4*j,4)}, v{lo} offset:{16*j}')
    def U(i):
        return (vFr + i) if i < 40 else ((vE + 24 + i - 40) if i < 64 else (vU + i - 64))
    sm2 = vE+8; sq2 = vE+10; t0 = vE+12; t1 = vE+13; sm = vE+14; sq = vE+15
    for j in range(56):
        if j % 4 == 0:
            a(f's_waitcnt lgkmcnt({13 - j//4})')
        a(f'v_lshlrev_b32 v{U(2*j)}, 16, v{vX+j}')
        a(f'v_and_b32 v{U(2*j+1)}, 0xffff0000, v{vX+j}')
        if j == 0:
            a(f'v_pk_mul_f32 {vr(sq2,2)}, {vr(U(0),2)}, {vr(U(0),2)}')
            a(f'v_mov_b32 v{sm2}, v{U(0)}')
            a(f'v_mov_b32 v{sm2+1}, v{U(1)}')
        else:
            a(f'v_pk_fma_f32 {vr(sq2,2)}, {vr(U(2*j),2)}, {vr(U(2*j),2)}, {vr(sq2,2)}')
            a(f'v_pk_add_f32 {vr(sm2,2)}, {vr(sm2,2)}, {vr(U(2*j),2)}')
    a(f'v_add_f32 v{sm}, v{sm2}, v{sm2+1}')
    a(f'v_add_f32 v{sq}, v{sq2}, v{sq2+1}')
    a('s_nop 1')
    for perm in ('[1,0,3,2]', '[2,3,0,1]'):
        a(f'v_add_f32_dpp v{t0}, v{sm}, v{sm} quad_perm:{perm} row_mask:0xf bank_mask:0xf')
        a(f'v_add_f32_dpp v{t1}, v{sq}, v{sq} quad_perm:{perm} row_mask:0xf bank_mask:0xf')
        a(f'v_mov_b32 v{sm}, v{t0}')
        a(f'v_mov_b32 v{sq}, v{t1}')
        a('s_nop 1')
    ln_finish(a, sm, sq, 448.0)
    rr2 = vE+8; nm2 = vE+10
    a(f'v_mov_b32 v{rr2}, v{sq}')
    a(f'v_mov_b32 v{rr2+1}, v{sq}')
    a(f'v_sub_f32 v{nm2}, 0, v{sm}')
    a(f'v_sub_f32 v{nm2+1}, 0, v{sm}')
    for j in range(56):
        a(f'v_pk_fma_f32 {vr(U(2*j),2)}, {vr(U(2*j),2)}, {vr(rr2,2)}, {vr(nm2,2)}')
        a(f'v_cvt_pk_bf16_f32 v{vX+j}, v{U(2*j)}, v{U(2*j+1)}')
        if j % 4 == 3:
            a(f'ds_write_b128 v{lo}, {vr(vX+j-3,4)} offset:{4*(j-3)}')
    for i in range(64):
        a(f'v_mov_b32 v{vAcc+i}, 0')
    a('s_waitcnt lgkmcnt(0)')
    a('s_barrier')
    G1, G2, rr, cc = vE+16, vE+17, vE+18, vE+19
    pa = vE + 20
    a(f'v_bfe_u32 v{G1}, v{vLane}, 4, 1')
    a(f'v_lshrrev_b32 v{G2}, 5, v{vLane}')
    a(f'v_bfe_u32 v{rr}, v{vLane}, 2, 2')
    a(f'v_and_b32 v{cc}, 3, v{vLane}')
    a(f'v_lshl_add_u32 v{rr}, v{G2}, 2, v{rr}')
    a(f'v_mul_u32_u24 v{pa}, 56, v{rr}')
    a(f'v_lshl_add_u32 v{cc}, v{G1}, 2, v{cc}')
    a(f'v_lshl_add_u32 v{pa}, v{cc}, 3, v{pa}')
    a('s_lshr_b32 s40, s23, 1')
    a('s_mul_i32 s40, s40, 3136')
    a(f's_add_u32 s40, s40, {K1_W + 2*K1_WB}')
    a(f'v_add_u32 v{pa}, s40, v{pa}')
    for ah in range(2):
        for ks in range(2):
            for half in range(2):
                a(f'ds_read_b64_tr_b16 {vr(vPhi+ah*8+ks*4+2*half,2)}, v{pa} offset:{ah*1568 + (16*ks+8*half)*56}')
    a('s_waitcnt lgkmcnt(0)')
    a('s_barrier')
    stamp(a, 1)

    prio(a)
    LZ = 'k1_zpath'
    a('s_cmp_ge_u32 s21, 6')
    a(f's_cbranch_scc1 {LZ}')

    def mainloop(kind):
        if kind == 'h':
            a('s_lshr_b32 s40, s23, 1')
            a('s_mul_i32 s40, s40, 112')
            a('s_and_b32 s41, s23, 1')
            a(f's_mul_i32 s41, s41, {64*896}')
            nA, nB = 2, 2
            aoff = [0, 56]; boff = [0, 32*896]
        else:
            a('s_lshr_b32 s40, s23, 2')
            a('s_mul_i32 s40, s40, 256')
            a('s_and_b32 s41, s23, 3')
            a(f's_mul_i32 s41, s41, {32*896}')
            nA, nB = 4, 1
            aoff = [0, 64, 128, 192]; boff = [0]
        va = vT[5]
        a(f'v_add_u32 v{va}, s40, v{vAad}')
        for m in range(4):
            a(f'v_add_u32 v{vBad[m]}, s41, v{vBad[m]}')
        NBLK = 14
        for blk in range(NBLK):
            if blk + 2 < NBLK:
                w_dma(blk + 2)
            for ks in range(2):
                fb = vFr + ks*20
                for i in range(nA):
                    for half in range(2):
                        off = (blk % 3)*K1_WB + (16*ks + 4*half)*448 + aoff[i]
                        a(f'ds_read_b64_tr_b16 {vr(fb+4*i+2*half,2)}, v{va} offset:{off}')
                for i in range(nB):
                    off = boff[i] + (blk >> 1)*128
                    a(f'ds_read_b128 {vr(fb+4*(nA+i),4)}, v{vBad[2*(blk&1)+ks]} offset:{off}')
            nrd = 2*nA + nB
            for ks in range(2):
                a(f's_waitcnt lgkmcnt({nrd if ks == 0 else 0})')
                fb = vFr + ks*20
                for i in range(nA):
                    for jb in range(nB):
                        t = i*nB + jb
                        a(f'v_mfma_f32_32x32x16_bf16 {vr(vAcc+16*t,16)}, {vr(fb+4*i,4)}, {vr(fb+4*(nA+jb),4)}, {vr(vAcc+16*t,16)}')
            if blk + 1 < NBLK:
                a(f's_waitcnt vmcnt({2 if blk + 2 < NBLK else 0})')
                a('s_barrier')
        stamp(a, 2)
        srd(a, 56, 54, 55, S*S*2)
        a('s_and_b32 s38, s2, 7')
        a('s_lshl_b32 s38, s38, 20')
        a('s_lshr_b32 s49, s2, 3')
        a('s_lshl_b32 s49, s49, 13')
        a('s_add_u32 s38, s38, s49')
        for m in range(5):
            a(f'buffer_load_dwordx4 {vr(vU+44,4)}, v{vT[1]}, s[56:59], s38 offen')
            a(f's_add_u32 s38, s38, {14336*16}')
        a('s_barrier')

    ERS = 272
    mainloop('h')
    a('s_and_b32 s39, s21, 1')
    a('s_lshl_b32 s39, s39, 3')
    a('s_lshr_b32 s40, s23, 1')
    a('s_lshl_b32 s40, s40, 1')
    a('s_add_u32 s39, s39, s40')
    a('s_mov_b32 s42, 0')
    a('s_mov_b32 s43, -1')
    tl = vT[0]; hh = vT[1]; wa = vT[2]; ra = vT[3]; ga = vT[4]
    a(f'v_and_b32 v{tl}, 31, v{vLane}')
    a(f'v_lshrrev_b32 v{hh}, 5, v{vLane}')
    a(f's_mul_i32 s45, s23, {64*ERS}')
    a(f'v_mul_u32_u24 v{wa}, {ERS}, v{tl}')
    a(f'v_lshl_add_u32 v{wa}, v{hh}, 3, v{wa}')
    a(f'v_add_u32 v{wa}, s45, v{wa}')
    a('s_lshl_b32 s40, s20, 7')
    a('s_and_b32 s41, s23, 1')
    a('s_lshl_b32 s41, s41, 6')
    a('s_add_u32 s40, s40, s41')
    LV = 'k1_vpath'
    a('s_cmp_ge_u32 s21, 4')
    a(f's_cbranch_scc1 {LV}')
    P = vE; p = vE + 8
    mx = vE + 24; mn = vE + 25; u0 = vE + 26; u1 = vE + 27; sp = vE + 28; sn = vE + 29
    en = vFr; ep = vFr + 16; T2 = vE + 32
    mx2 = vU; mn2 = vU + 2; sp2 = vU + 4; sn2 = vU + 6
    a(f's_mov_b32 s44, {f2u(L2E)}')
    a(f's_mov_b32 s45, {f2u(L2E)}')
    a(f's_mov_b32 s46, {f2u(-L2E)}')
    a(f's_mov_b32 s47, {f2u(-L2E)}')
    a(f's_mul_i32 s53, s23, {64*ERS}')
    for ah in range(2):
        for b in range(2):
            acc = vAcc + 16*(ah*2+b)
            for j in range(8):
                a(f'v_cvt_pk_bf16_f32 v{P+j}, v{acc+2*j}, v{acc+2*j+1}')
            a(f'v_cndmask_b32 v{P+6}, v{P+6}, 0, s[42:43]')
            a(f'v_cndmask_b32 v{P+7}, v{P+7}, 0, s[42:43]')
            a('s_nop 1')
            a(f'v_mfma_f32_32x32x16_bf16 {vr(T2,16)}, {vr(vPhi+ah*8,4)}, {vr(P,4)}, 0')
            a(f'v_mfma_f32_32x32x16_bf16 {vr(T2,16)}, {vr(vPhi+ah*8+4,4)}, {vr(P+4,4)}, {vr(T2,16)}')
            a.nop(12)
            for j in range(8):
                a(f'v_cvt_pk_bf16_f32 v{u0}, v{T2+2*j}, v{T2+2*j+1}')
                a(f'v_lshlrev_b32 v{p+2*j}, 16, v{u0}')
                a(f'v_and_b32 v{p+2*j+1}, 0xffff0000, v{u0}')
            for j in range(12, 16):
                a(f'v_cndmask_b32 v{p+j}, v{p+j}, v{p+11}, s[42:43]')
            a(f'v_max3_f32 v{mx}, v{p}, v{p+1}, v{p+2}')
            a(f'v_min3_f32 v{mn}, v{p}, v{p+1}, v{p+2}')
            for j in range(3, 15, 2):
                a(f'v_max3_f32 v{mx}, v{mx}, v{p+j}, v{p+j+1}')
                a(f'v_min3_f32 v{mn}, v{mn}, v{p+j}, v{p+j+1}')
            a(f'v_max_f32 v{mx}, v{mx}, v{p+15}')
            a(f'v_min_f32 v{mn}, v{mn}, v{p+15}')
            xhalf(a, mx, u0, u1, 'v_max_f32', mx)
            xhalf(a, mn, u0, u1, 'v_min_f32', mn)
            a(f'v_mul_f32 v{mx2}, s44, v{mx}')
            a(f'v_mul_f32 v{mn2}, s44, v{mn}')
            a(f'v_sub_f32 v{mx2}, 0, v{mx2}')
            for j in range(0, 16, 2):
                a(f'v_pk_fma_f32 {vr(ep+j,2)}, {vr(p+j,2)}, s[44:45], {vr(mx2,2)} op_sel_hi:[1,1,0]')
                a(f'v_pk_fma_f32 {vr(en+j,2)}, {vr(p+j,2)}, s[46:47], {vr(mn2,2)} op_sel_hi:[1,1,0]')
            for j in range(16):
                a(f'v_exp_f32 v{ep+j}, v{ep+j}')
                a(f'v_exp_f32 v{en+j}, v{en+j}')
            a('s_nop 0')
            for j in range(12, 16):
                a(f'v_cndmask_b32 v{ep+j}, v{ep+j}, 0, s[42:43]')
                a(f'v_cndmask_b32 v{en+j}, v{en+j}, 0, s[42:43]')
            a(f'v_pk_add_f32 {vr(sp2,2)}, {vr(ep,2)}, {vr(ep+2,2)}')
            a(f'v_pk_add_f32 {vr(sn2,2)}, {vr(en,2)}, {vr(en+2,2)}')
            for j in range(4, 16, 2):
                a(f'v_pk_add_f32 {vr(sp2,2)}, {vr(sp2,2)}, {vr(ep+j,2)}')
                a(f'v_pk_add_f32 {vr(sn2,2)}, {vr(sn2,2)}, {vr(en+j,2)}')
            a(f'v_add_f32 v{sp}, v{sp2}, v{sp2+1}')
            a(f'v_add_f32 v{sn}, v{sn2}, v{sn2+1}')
            xhalf(a, sp, u0, u1, 'v_add_f32', sp)
            xhalf(a, sn, u0, u1, 'v_add_f32', sn)
            a(f'v_rcp_f32 v{sp2}, v{sp}')
            a(f'v_rcp_f32 v{sn2}, v{sn}')
            a('s_nop 0')
            for j in range(0, 16, 2):
                a(f'v_pk_mul_f32 {vr(ep+j,2)}, {vr(ep+j,2)}, {vr(sp2,2)} op_sel_hi:[1,0]')
                a(f'v_pk_mul_f32 {vr(en+j,2)}, {vr(en+j,2)}, {vr(sn2,2)} op_sel_hi:[1,0]')
            for j in range(8):
                a(f'v_cvt_pk_bf16_f32 v{ep+j}, v{ep+2*j}, v{ep+2*j+1}')
                a(f'v_cvt_pk_bf16_f32 v{en+j}, v{en+2*j}, v{en+2*j+1}')
            for q in range(4):
                for neg, src in ((0, ep), (1, en)):
                    a(f'ds_write_b64 v{wa}, {vr(src+2*q,2)} offset:{b*32*ERS + ah*128 + q*16 + neg*64}')
    LKS = 'k1_kst'
    a('s_cmp_ge_u32 s21, 2')
    a(f's_cbranch_scc1 {LKS}')
    a(f'v_mul_u32_u24 v{ra}, {ERS}, v{tl}')
    a(f'v_lshl_add_u32 v{ra}, v{hh}, 4, v{ra}')
    a(f'v_add_u32 v{ra}, s53, v{ra}')
    a(f'v_lshlrev_b32 v{ga}, 4, v{vLane}')
    a('s_lshl_b32 s46, s40, 11')
    a('s_lshl_b32 s47, s39, 12')
    a('s_add_u32 s46, s46, s47')
    a('s_waitcnt lgkmcnt(0)')
    idx = [(tt, ah, ks) for tt in range(2) for ah in range(2) for ks in range(4)]
    for i, (tt, ah, ks) in enumerate(idx):
        a(f'ds_read_b128 {vr(vAcc+4*i,4)}, v{ra} offset:{tt*32*ERS + ah*128 + ks*32}')
    for i, (tt, ah, ks) in enumerate(idx):
        a(f's_waitcnt lgkmcnt({15-i})')
        a(f's_add_u32 s47, s46, {WS_PHIQ + tt*65536 + ah*4096 + ks*1024}')
        a(f'buffer_store_dwordx4 {vr(vAcc+4*i,4)}, v{ga}, s[16:19], s47 offen')
    a(f's_branch {END}')
    a.lab(LKS)
    a(f'v_lshrrev_b32 v{vT[5]}, 4, v{vLane}')
    a(f'v_and_b32 v{vT[6]}, 15, v{vLane}')
    a(f'v_mul_u32_u24 v{ra}, {ERS}, v{vT[5]}')
    a(f'v_lshl_add_u32 v{ra}, v{vT[6]}, 4, v{ra}')
    a(f'v_add_u32 v{ra}, s53, v{ra}')
    a(f'v_lshlrev_b32 v{ga}, 11, v{vT[5]}')
    a(f'v_lshl_add_u32 v{ga}, v{vT[6]}, 4, v{ga}')
    a('s_lshl_b32 s46, s40, 11')
    a('s_lshl_b32 s47, s39, 7')
    a('s_add_u32 s46, s46, s47')
    a(f's_add_u32 s46, s46, {WS_PHIK}')
    a('s_waitcnt lgkmcnt(0)')
    for i in range(16):
        a(f'ds_read_b128 {vr(vAcc+4*i,4)}, v{ra} offset:{4*i*ERS}')
    for i in range(16):
        a(f's_waitcnt lgkmcnt({15-i})')
        a(f'buffer_store_dwordx4 {vr(vAcc+4*i,4)}, v{ga}, s[16:19], s46 offen')
        a('s_add_u32 s46, s46, 8192')
    a(f's_branch {END}')
    a.lab(LV)
    for ah in range(2):
        for b in range(2):
            acc = vAcc + 16*(ah*2+b)
            for j in range(8):
                a(f'v_cvt_pk_bf16_f32 v{vE+j}, v{acc+2*j}, v{acc+2*j+1}')
            for q in range(4):
                if q == 3:
                    a('s_mov_b64 exec, 0xffffffff')
                a(f'ds_write_b64 v{wa}, {vr(vE+2*q,2)} offset:{b*32*ERS + ah*56 + q*16}')
                if q == 3:
                    a('s_mov_b64 exec, -1')
    a(f'v_lshrrev_b32 v{vT[5]}, 3, v{vLane}')
    a(f'v_and_b32 v{vT[6]}, 7, v{vLane}')
    a(f'v_mul_u32_u24 v{ra}, {ERS}, v{vT[5]}')
    a(f'v_lshl_add_u32 v{ra}, v{vT[6]}, 4, v{ra}')
    a(f'v_add_u32 v{ra}, s45, v{ra}')
    a(f'v_mul_u32_u24 v{ga}, 896, v{vT[5]}')
    a(f'v_lshl_add_u32 v{ga}, v{vT[6]}, 4, v{ga}')
    a('s_mul_i32 s46, s40, 896')
    a('s_mul_i32 s47, s39, 56')
    a('s_add_u32 s46, s46, s47')
    a(f's_add_u32 s46, s46, {WS_V}')
    a(f'v_cmp_gt_u32 vcc, 7, v{vT[6]}')
    a('s_waitcnt lgkmcnt(0)')
    for i in range(8):
        a(f'ds_read_b128 {vr(vAcc+4*i,4)}, v{ra} offset:{8*i*ERS}')
    a('s_and_saveexec_b64 s[50:51], vcc')
    for i in range(8):
        a(f's_waitcnt lgkmcnt({7-i})')
        a(f'buffer_store_dwordx4 {vr(vAcc+4*i,4)}, v{ga}, s[16:19], s46 offen')
        a(f's_add_u32 s46, s46, {8*896}')
    a(f's_branch {END}')

    a.lab(LZ)
    mainloop('z')
    tl = vT[0]; hh = vT[1]; wa = vT[2]; ra = vT[3]; ga = vT[4]; staddr = vT[7]
    a(f'v_and_b32 v{tl}, 31, v{vLane}')
    a(f'v_lshrrev_b32 v{hh}, 5, v{vLane}')
    a(f's_mul_i32 s49, s23, {32*ERS}')
    a(f'v_mul_u32_u24 v{wa}, {ERS}, v{tl}')
    a(f'v_lshl_add_u32 v{wa}, v{hh}, 3, v{wa}')
    a(f'v_add_u32 v{wa}, s49, v{wa}')
    a('s_lshl_b32 s40, s20, 7')
    a('s_and_b32 s41, s23, 3')
    a('s_lshl_b32 s41, s41, 5')
    a('s_add_u32 s40, s40, s41')
    a(f'v_add_u32 v{tl}, s40, v{tl}')
    a('s_sub_u32 s41, s21, 6')
    a('s_and_b32 s45, s41, 3')
    a('s_mul_i32 s45, s45, 448')
    a('s_lshr_b32 s46, s23, 2')
    a('s_lshl_b32 s46, s46, 8')
    a('s_add_u32 s45, s45, s46')
    a('s_cmp_ge_u32 s41, 4')
    a(f's_mov_b32 s46, {WS_Z2}')
    a(f's_cselect_b32 s46, s46, {WS_Z1}')
    a('s_add_u32 s45, s45, s46')
    a('s_mul_i32 s46, s40, 1792')
    a('s_add_u32 s45, s45, s46')
    a('s_and_b32 s46, s41, 3')
    a('s_lshl_b32 s46, s46, 14')
    a(f's_add_u32 s46, s46, {WS_ST}')
    a(f'v_lshlrev_b32 v{staddr}, 2, v{tl}')
    a(f's_mov_b32 s44, {f2u(GELU_K)}')
    a(f's_mov_b32 s47, {f2u(0.044715)}')
    sm = vE + 40; sq = vE + 41; u0 = vE + 42; u1 = vE + 43
    gk = vU
    a(f'v_mov_b32 v{gk}, {f2u(GELU_K*0.044715)}')
    a(f'v_mov_b32 v{gk+1}, {f2u(GELU_K*0.044715)}')
    a(f'v_mov_b32 v{gk+2}, {f2u(GELU_K)}')
    a(f'v_mov_b32 v{gk+3}, {f2u(GELU_K)}')
    a(f'v_mov_b32 v{gk+4}, 1.0')
    a(f'v_mov_b32 v{gk+5}, 1.0')
    a(f'v_mov_b32 v{sm}, 0')
    a(f'v_mov_b32 v{sq}, 0')
    for t in range(4):
        lskip = a.newlab('k1zs')
        if t == 3:
            a('s_cmp_ge_u32 s23, 4')
            a(f's_cbranch_scc1 {lskip}')
        acc = vAcc + 16*t
        xs = vE; w = vE + 16
        for j in range(8):
            a(f'v_cvt_pk_bf16_f32 v{u0}, v{acc+2*j}, v{acc+2*j+1}')
            a(f'v_lshlrev_b32 v{xs+2*j}, 16, v{u0}')
            a(f'v_and_b32 v{xs+2*j+1}, 0xffff0000, v{u0}')
        for j in range(0, 16, 2):
            a(f'v_pk_mul_f32 {vr(w+j,2)}, {vr(xs+j,2)}, {vr(xs+j,2)}')
            a(f'v_pk_fma_f32 {vr(w+j,2)}, {vr(w+j,2)}, {vr(gk,2)}, {vr(gk+2,2)}')
            a(f'v_pk_mul_f32 {vr(w+j,2)}, {vr(w+j,2)}, {vr(xs+j,2)}')
        for j in range(16):
            a(f'v_exp_f32 v{w+j}, v{w+j}')
        a('s_nop 0')
        for j in range(0, 16, 2):
            a(f'v_pk_add_f32 {vr(w+j,2)}, {vr(w+j,2)}, {vr(gk+4,2)}')
        for j in range(16):
            a(f'v_rcp_f32 v{w+j}, v{w+j}')
        a('s_nop 0')
        for j in range(0, 16, 2):
            a(f'v_pk_mul_f32 {vr(w+j,2)}, {vr(w+j,2)}, {vr(xs+j,2)}')
        for j in range(8):
            a(f'v_cvt_pk_bf16_f32 v{xs+j}, v{w+2*j}, v{w+2*j+1}')
        for q in range(4):
            a(f'ds_write_b64 v{wa}, {vr(xs+2*q,2)} offset:{t*64+q*16}')
        for j in range(8):
            a(f'v_dot2c_f32_bf16 v{sq}, v{xs+j}, v{xs+j}')
            a(f'v_lshlrev_b32 v{u0}, 16, v{xs+j}')
            a(f'v_and_b32 v{u1}, 0xffff0000, v{xs+j}')
            a(f'v_add_f32 v{sm}, v{sm}, v{u0}')
            a(f'v_add_f32 v{sm}, v{sm}, v{u1}')
        if t == 3:
            a.lab(lskip)
    a(f'v_lshrrev_b32 v{vT[5]}, 4, v{vLane}')
    a(f'v_and_b32 v{vT[6]}, 15, v{vLane}')
    a(f'v_mul_u32_u24 v{ra}, {ERS}, v{vT[5]}')
    a(f'v_lshl_add_u32 v{ra}, v{vT[6]}, 4, v{ra}')
    a(f'v_add_u32 v{ra}, s49, v{ra}')
    a(f'v_mul_u32_u24 v{ga}, 1792, v{vT[5]}')
    a(f'v_lshl_add_u32 v{ga}, v{vT[6]}, 4, v{ga}')
    a('s_cmp_ge_u32 s23, 4')
    a('s_cselect_b32 s52, 12, 16')
    a(f'v_cmp_gt_u32 vcc, s52, v{vT[6]}')
    a('s_waitcnt lgkmcnt(0)')
    for i in range(8):
        a(f'ds_read_b128 {vr(vAcc+4*i,4)}, v{ra} offset:{4*i*ERS}')
    a('s_and_saveexec_b64 s[50:51], vcc')
    for i in range(8):
        a(f's_waitcnt lgkmcnt({7-i})')
        a(f'buffer_store_dwordx4 {vr(vAcc+4*i,4)}, v{ga}, s[16:19], s45 offen')
        a(f's_add_u32 s45, s45, {4*1792}')
    a('s_mov_b64 exec, -1')
    a('s_cmp_lt_u32 s41, 4')
    a(f's_cbranch_scc1 {END}')
    xhalf(a, sm, u0, u1, 'v_add_f32', sm)
    xhalf(a, sq, u0, u1, 'v_add_f32', sq)
    a(f'v_and_b32 v{u0}, 31, v{vLane}')
    a(f'v_lshlrev_b32 v{u0}, 3, v{u0}')
    a('s_and_b32 s47, s23, 3')
    a('s_lshl_b32 s47, s47, 8')
    a('s_add_u32 s47, s47, 81920')
    a(f'v_add_u32 v{u0}, s47, v{u0}')
    a(f'v_mov_b32 v{vU+8}, v{sm}')
    a(f'v_mov_b32 v{vU+9}, v{sq}')
    lw = a.newlab('k1st')
    a('s_cmp_lt_u32 s23, 4')
    a(f's_cbranch_scc1 {lw}')
    a(f'ds_write_b64 v{u0}, {vr(vU+8,2)}')
    a('s_waitcnt lgkmcnt(0)')
    a.lab(lw)
    a('s_barrier')
    a('s_cmp_ge_u32 s23, 4')
    a(f's_cbranch_scc1 {END}')
    a(f'ds_read_b64 {vr(vU+8,2)}, v{u0}')
    a('s_waitcnt lgkmcnt(0)')
    a(f'v_add_f32 v{sm}, v{sm}, v{vU+8}')
    a(f'v_add_f32 v{sq}, v{sq}, v{vU+9}')
    a('s_mov_b64 exec, 0xffffffff')
    a(f'buffer_store_dword v{sm}, v{staddr}, s[16:19], s46 offen')
    a(f's_add_u32 s46, s46, 8192')
    a(f'buffer_store_dword v{sq}, v{staddr}, s[16:19], s46 offen')
    a.lab(END)
    a('s_mov_b64 exec, -1')
    stamp(a, 3)
    stamp_flush(a, 8, 0, vE)
    a.lab(END + '_x')
    a('s_endpgm')
    return name, R.hi, K1_LDS

def gen_k2(a):
    name = 'k2_mix_kernel'
    header(a, name)
    END = 'k2_end'; KV = 'k2_kv'
    A_RS = 192
    A_BUF = 64*A_RS; B_BUF = 16384
    L_A = 16384
    L_B = L_A + 3*A_BUF
    SLAB = 128*272
    LDS = max(L_B + 4*B_BUF, 4*SLAB, 8*16384)
    NBLK = 32
    a('s_cmp_ge_u32 s2, 240')
    a(f's_cbranch_scc1 {END}_x')
    a('s_load_dwordx4 s[24:27], s[0:1], 48')
    a('s_load_dwordx2 s[32:33], s[0:1], 88')
    a('s_load_dwordx2 s[54:55], s[0:1], 24')
    a('s_load_dwordx2 s[56:57], s[0:1], 64')
    stamp(a, 0); stamp(a, 1); stamp(a, 2)
    R = Regs(1)
    vLane = R.alloc()
    vT = [R.alloc() for _ in range(10)]
    vAg = R.alloc(); vAl = R.alloc(); vSt = R.alloc()
    vBg = [R.alloc(), R.alloc()]
    vAad = R.alloc(); vBad = R.alloc()
    vStg = [R.alloc(4, 4) for _ in range(4)]
    vMR = [R.alloc(2, 2) for _ in range(2)]
    vAcc = R.alloc(64, 4)
    vFr = [R.alloc(16, 4), R.alloc(16, 4)]
    vE = R.alloc(40, 4)
    a(f'v_and_b32 v{vLane}, 63, v0')
    a(f'v_lshrrev_b32 v{vT[0]}, 6, v0')
    a('s_nop 0')
    a(f'v_readfirstlane_b32 s23, v{vT[0]}')
    a('s_and_b32 s20, s2, 7')
    a('s_lshl_b32 s20, s20, 1')
    a('s_lshr_b32 s21, s2, 3')
    a('s_and_b32 s34, s21, 1')
    a('s_add_u32 s20, s20, s34')
    a('s_lshr_b32 s21, s2, 4')
    sl = vT[0]; c = vT[1]
    a(f'v_lshrrev_b32 v{sl}, 3, v0')
    a(f'v_and_b32 v{c}, 7, v0')
    a(f'v_lshlrev_b32 v{c}, 4, v{c}')
    a(f'v_mul_u32_u24 v{vAg}, 1792, v{sl}')
    a(f'v_add_u32 v{vAg}, v{vAg}, v{c}')
    a('s_lshl_b32 s34, s21, 7')
    a(f's_add_u32 s34, s34, {WS_Z2}')
    a(f'v_add_u32 v{vAg}, s34, v{vAg}')
    a(f'v_mul_u32_u24 v{vAl}, {A_RS}, v{sl}')
    a(f'v_add_u32 v{vAl}, v{vAl}, v{c}')
    a(f'v_add_u32 v{vAl}, {L_A}, v{vAl}')
    a(f'v_lshlrev_b32 v{vSt}, 3, v{sl}')
    a('s_lshl_b32 s34, s20, 19')
    a('s_lshl_b32 s35, s23, 16')
    a('s_add_u32 s34, s34, s35')
    a(f'v_lshrrev_b32 v{vT[2]}, 3, v{vLane}')
    a(f'v_lshrrev_b32 v{vT[3]}, 4, v{vLane}')
    a(f'v_and_b32 v{vT[4]}, 7, v{vLane}')
    for j in range(2):
        a(f'v_add_u32 v{vT[5]}, {4*j}, v{vT[3]}')
        a(f'v_and_b32 v{vT[5]}, 7, v{vT[5]}')
        a(f'v_xor_b32 v{vT[5]}, v{vT[5]}, v{vT[4]}')
        a(f'v_add_u32 v{vT[6]}, {8*j}, v{vT[2]}')
        a(f'v_lshlrev_b32 v{vBg[j]}, 12, v{vT[6]}')
        a(f'v_lshl_add_u32 v{vBg[j]}, v{vT[5]}, 4, v{vBg[j]}')
        a(f'v_add_u32 v{vBg[j]}, s34, v{vBg[j]}')
    a('s_lshl_b32 s35, s23, 11')
    a(f's_add_u32 s35, s35, {L_B}')
    a(f'v_lshlrev_b32 v{vT[2]}, 4, v0')
    a('s_waitcnt lgkmcnt(0)')
    srd(a, 4, 24, 25, S*S*2)
    srd(a, 8, 26, 27, S*2)
    srd(a, 16, 32, 33, WS_SIZE)
    a('s_cmp_ge_u32 s2, 224')
    a(f's_cbranch_scc1 {KV}')
    sbuf = vAcc
    for j in range(8):
        a(f's_mov_b32 s38, {WS_ST + j*8192}')
        a(f'buffer_load_dwordx4 {vr(sbuf+4*j,4)}, v{vT[2]}, s[16:19], s38 offen')
    def issue(blk):
        a(f's_mov_b32 s36, {blk*64*1792}')
        a(f's_mov_b32 s37, {blk*128}')
        a(f'buffer_load_dwordx4 {vr(vStg[blk%4],4)}, v{vAg}, s[16:19], s36 offen')
        for j in range(2):
            a(f's_add_u32 m0, s35, {(blk%4)*B_BUF + j*1024}')
            a('s_nop 0')
            a(f'buffer_load_dwordx4 v{vBg[j]}, s[4:7], s37 offen lds')
    for b in range(4):
        issue(b)
    tr_addr(a, vAad, vLane, A_RS, vT[3:7])
    a('s_lshr_b32 s40, s23, 1')
    a(f's_mul_i32 s41, s40, {16*A_RS}')
    a(f's_add_u32 s41, s41, {L_A}')
    a(f'v_add_u32 v{vAad}, s41, v{vAad}')
    a(f'v_and_b32 v{vT[3]}, 31, v{vLane}')
    a(f'v_lshrrev_b32 v{vT[4]}, 5, v{vLane}')
    a('s_lshl_b32 s41, s40, 1')
    a(f'v_add_u32 v{vT[4]}, s41, v{vT[4]}')
    a(f'v_bfe_u32 v{vT[5]}, v{vT[3]}, 1, 3')
    a(f'v_xor_b32 v{vT[4]}, v{vT[4]}, v{vT[5]}')
    a(f'v_lshlrev_b32 v{vBad}, 7, v{vT[3]}')
    a(f'v_lshl_add_u32 v{vBad}, v{vT[4]}, 4, v{vBad}')
    a('s_and_b32 s41, s23, 1')
    a('s_lshl_b32 s41, s41, 13')
    a(f's_add_u32 s41, s41, {L_B}')
    a(f'v_add_u32 v{vBad}, s41, v{vBad}')
    a('s_waitcnt vmcnt(12)')
    for tk in range(4):
        sm = vE + 2*tk + 1; sq = vE + 2*tk
        a(f'v_add_f32 v{sm}, v{sbuf+tk}, v{sbuf+8+tk}')
        a(f'v_add_f32 v{sq}, v{sbuf+4+tk}, v{sbuf+12+tk}')
        for j in range(2, 4):
            a(f'v_add_f32 v{sm}, v{sm}, v{sbuf+8*j+tk}')
            a(f'v_add_f32 v{sq}, v{sq}, v{sbuf+8*j+4+tk}')
        ln_finish(a, sm, sq, 896.0)
    a(f'v_lshlrev_b32 v{vT[3]}, 5, v0')
    a(f'ds_write_b128 v{vT[3]}, {vr(vE,4)}')
    a(f'ds_write_b128 v{vT[3]}, {vr(vE+4,4)} offset:16')
    for i in range(64):
        a(f'v_mov_b32 v{vAcc+i}, 0')
    a('s_waitcnt lgkmcnt(0)')
    a('s_barrier')

    def transform(blk, j0, j1):
        x = vStg[blk % 4]; mr = vMR[blk % 2]
        t0 = vT[5]; t1 = vT[6]
        for j in range(j0, j1):
            a(f'v_lshlrev_b32 v{t0}, 16, v{x+j}')
            a(f'v_and_b32 v{t1}, 0xffff0000, v{x+j}')
            a(f'v_fma_f32 v{t0}, v{t0}, v{mr}, -v{mr+1}')
            a(f'v_fma_f32 v{t1}, v{t1}, v{mr}, -v{mr+1}')
            a(f'v_cvt_pk_bf16_f32 v{x+j}, v{t0}, v{t1}')
    def awrite(blk):
        a(f'ds_write_b128 v{vAl}, {vr(vStg[blk%4],4)} offset:{(blk%3)*A_BUF}')
    def mr_read(blk):
        a(f'ds_read_b64 {vr(vMR[blk%2],2)}, v{vSt} offset:{512*blk}')
    def frag_read(blk):
        F = vFr[blk % 2]
        for i in range(2):
            for half in range(2):
                a(f'ds_read_b64_tr_b16 {vr(F+4*i+2*half,2)}, v{vAad} offset:{(blk%3)*A_BUF + 4*half*A_RS + 64*i}')
        for i in range(2):
            a(f'ds_read_b128 {vr(F+8+4*i,4)}, v{vBad} offset:{(blk%4)*B_BUF + 4096*i}')

    mr_read(0); mr_read(1)
    a('s_waitcnt vmcnt(6) lgkmcnt(0)')
    transform(0, 0, 4); awrite(0)
    transform(1, 0, 4); awrite(1)
    mr_read(2)
    a('s_waitcnt lgkmcnt(0)')
    a('s_barrier')
    frag_read(0)
    prio(a)
    stamp(a, 1)
    for i in range(NBLK):
        F = vFr[i % 2]
        if i + 4 < NBLK:
            issue(i + 4)
        if i + 1 < NBLK:
            a('s_waitcnt lgkmcnt(0)')
            frag_read(i + 1)
        else:
            a('s_waitcnt lgkmcnt(0)')
        nout = 3 * sum(1 for b in (i+3, i+4) if b < NBLK)
        def mf(t):
            ii, jb = t // 2, t % 2
            a(f'v_mfma_f32_32x32x16_bf16 {vr(vAcc+16*t,16)}, {vr(F+4*ii,4)}, {vr(F+8+4*jb,4)}, {vr(vAcc+16*t,16)}')
        mf(0)
        if i + 2 < NBLK:
            a(f's_waitcnt vmcnt({nout})')
            transform(i + 2, 0, 2)
        mf(1)
        if i + 2 < NBLK:
            transform(i + 2, 2, 4)
        mf(2)
        if i + 2 < NBLK:
            awrite(i + 2)
            if i + 3 < NBLK:
                mr_read(i + 3)
        mf(3)
        if i + 1 < NBLK:
            a('s_waitcnt lgkmcnt(0)')
            a('s_barrier')
    stamp(a, 2)
    za = [vT[1], vT[2]]; ba = vT[3]
    a(f'v_lshrrev_b32 v{vT[4]}, 3, v0')
    a(f'v_and_b32 v{vT[5]}, 7, v0')
    a('s_lshl_b32 s40, s20, 7')
    a(f'v_add_u32 v{vT[6]}, s40, v{vT[4]}')
    a(f'v_lshlrev_b32 v{ba}, 1, v{vT[6]}')
    a(f'v_mul_u32_u24 v{za[0]}, 1792, v{vT[6]}')
    a(f'v_lshl_add_u32 v{za[0]}, v{vT[5]}, 4, v{za[0]}')
    a(f'v_add_u32 v{za[1]}, {64*1792}, v{za[0]}')
    a('s_lshl_b32 s41, s21, 7')
    a(f's_add_u32 s42, s41, {WS_Z1}')
    a(f's_add_u32 s43, s41, {WS_U}')
    z1 = vStg[0]; bb = vStg[2]
    for j in range(2):
        a(f'buffer_load_dwordx4 {vr(z1+4*j,4)}, v{za[j]}, s[16:19], s42 offen')
        a(f'buffer_load_ushort v{bb+j}, v{ba}, s[8:11], 0 offen offset:{128*j}')
    srd(a, 60, 54, 55, D*D*2)
    srd(a, 76, 56, 57, FH*D*2)
    a(f'v_lshlrev_b32 v{vT[9]}, 4, v0')
    a('s_lshr_b32 s38, s2, 3')
    a('s_lshl_b32 s38, s38, 13')
    for m in range(2):
        a(f'buffer_load_dwordx4 {vr(vE+32,4)}, v{vT[9]}, s[60:63], s38 offen')
        a(f's_add_u32 s38, s38, {28*8192}')
    a('s_lshr_b32 s38, s2, 3')
    a('s_lshl_b32 s38, s38, 13')
    for m in range(4):
        a(f'buffer_load_dwordx4 {vr(vE+32,4)}, v{vT[9]}, s[76:79], s38 offen')
        a(f's_add_u32 s38, s38, {28*8192}')
    wa = vT[7]; ra = vT[8]
    a(f'v_and_b32 v{vT[9]}, 31, v{vLane}')
    a(f'v_mul_u32_u24 v{wa}, 272, v{vT[9]}')
    a(f'v_lshrrev_b32 v{vT[9]}, 5, v{vLane}')
    a(f'v_lshl_add_u32 v{wa}, v{vT[9]}, 4, v{wa}')
    a('s_lshr_b32 s40, s23, 1')
    a(f's_mul_i32 s40, s40, {SLAB}')
    a('s_and_b32 s41, s23, 1')
    a(f's_mul_i32 s41, s41, {64*272}')
    a('s_add_u32 s40, s40, s41')
    a(f'v_add_u32 v{wa}, s40, v{wa}')
    a(f'v_mul_u32_u24 v{ra}, 272, v{vT[4]}')
    a(f'v_lshl_add_u32 v{ra}, v{vT[5]}, 5, v{ra}')
    a('s_barrier')
    for ii in range(2):
        for jb in range(2):
            for q in range(4):
                a(f'ds_write_b128 v{wa}, {vr(vAcc+16*(2*ii+jb)+4*q,4)} offset:{jb*32*272 + (32*ii+8*q)*4}')
    a('s_waitcnt lgkmcnt(0)')
    a('s_barrier')
    for j in range(2):
        for kg in range(4):
            for h2 in range(2):
                off = kg*SLAB + j*64*272 + h2*16
                if off < 65536:
                    a(f'ds_read_b128 {vr(vAcc+32*j+8*kg+4*h2,4)}, v{ra} offset:{off}')
                else:
                    a(f'v_add_u32 v{vT[9]}, {off}, v{ra}')
                    a(f'ds_read_b128 {vr(vAcc+32*j+8*kg+4*h2,4)}, v{vT[9]}')
    a('s_waitcnt vmcnt(6) lgkmcnt(0)')
    t0 = vT[5]; t1 = vT[6]; t2 = vT[9]
    for j in range(2):
        g = vAcc + 32*j
        for kg in range(1, 4):
            for e in range(8):
                a(f'v_add_f32 v{g+e}, v{g+e}, v{g+8*kg+e}')
        a(f'v_lshlrev_b32 v{bb+j}, 16, v{bb+j}')
        for e in range(4):
            a(f'v_cvt_pk_bf16_f32 v{t2}, v{g+2*e}, v{g+2*e+1}')
            a(f'v_lshlrev_b32 v{t0}, 16, v{t2}')
            a(f'v_and_b32 v{t1}, 0xffff0000, v{t2}')
            a(f'v_add_f32 v{t0}, v{t0}, v{bb+j}')
            a(f'v_add_f32 v{t1}, v{t1}, v{bb+j}')
            a(f'v_cvt_pk_bf16_f32 v{t2}, v{t0}, v{t1}')
            a(f'v_lshlrev_b32 v{t0}, 16, v{t2}')
            a(f'v_and_b32 v{t1}, 0xffff0000, v{t2}')
            zz = z1 + 4*j + e
            a(f'v_lshlrev_b32 v{t2}, 16, v{zz}')
            a(f'v_and_b32 v{zz}, 0xffff0000, v{zz}')
            a(f'v_mul_f32 v{t0}, v{t0}, v{t2}')
            a(f'v_mul_f32 v{t1}, v{t1}, v{zz}')
            a(f'v_cvt_pk_bf16_f32 v{zz}, v{t0}, v{t1}')
        a(f'buffer_store_dwordx4 {vr(z1+4*j,4)}, v{za[j]}, s[16:19], s43 offen')
    a(f's_branch {END}')

    a.lab(KV)
    a('s_sub_u32 s20, s2, 224')
    PRS = 192
    vFrK = vFr[0]
    pg = vT[3]; pl = vT[4]; vg = vT[5]; vl = vT[6]
    a(f'v_lshrrev_b32 v{vT[0]}, 3, v{vLane}')
    a(f'v_and_b32 v{vT[1]}, 7, v{vLane}')
    a(f'v_lshlrev_b32 v{pg}, 11, v{vT[0]}')
    a(f'v_lshl_add_u32 v{pg}, v{vT[1]}, 4, v{pg}')
    a(f'v_mul_u32_u24 v{pl}, {PRS}, v{vT[0]}')
    a(f'v_lshl_add_u32 v{pl}, v{vT[1]}, 4, v{pl}')
    a('s_lshl_b32 s40, s23, 14')
    a(f'v_add_u32 v{pl}, s40, v{pl}')
    a(f'v_mul_u32_u24 v{vg}, 896, v{vT[0]}')
    a(f'v_lshl_add_u32 v{vg}, v{vT[1]}, 3, v{vg}')
    a(f'v_lshlrev_b32 v{vl}, 6, v{vT[0]}')
    a(f'v_lshl_add_u32 v{vl}, v{vT[1]}, 3, v{vl}')
    a(f'v_add_u32 v{vl}, s40, v{vl}')
    a(f'v_add_u32 v{vl}, {64*PRS}, v{vl}')
    a(f'v_cmp_eq_u32 s[44:45], 7, v{vT[1]}')
    a('s_lshl_b32 s41, s23, 19')
    a('s_lshl_b32 s42, s20, 7')
    a('s_add_u32 s41, s41, s42')
    a(f's_add_u32 s41, s41, {WS_PHIK}')
    a(f's_mul_i32 s42, s23, {256*896}')
    a('s_mul_i32 s43, s20, 56')
    a('s_add_u32 s42, s42, s43')
    a(f's_add_u32 s42, s42, {WS_V}')
    fa = vT[8]; fb = vT[9]
    tr_addr(a, fb, vLane, PRS, [vE, vE+1, vE+2, vE+3])
    a(f'v_add_u32 v{fb}, s40, v{fb}')
    tr_addr(a, fa, vLane, 64, [vE, vE+1, vE+2, vE+3])
    a(f'v_add_u32 v{fa}, s40, v{fa}')
    a(f'v_add_u32 v{fa}, {64*PRS}, v{fa}')
    for i in range(32):
        a(f'v_mov_b32 v{vAcc+i}, 0')
    one = vE + 36
    a(f'v_mov_b32 v{one}, 0x00003f80')
    pbuf = vAcc + 32
    vbuf = vFr[1]
    def kv_issue(ch):
        for i in range(8):
            a(f's_add_u32 s46, s41, {(ch*64 + 8*i)*2048}')
            a(f'buffer_load_dwordx4 {vr(pbuf+4*i,4)}, v{pg}, s[16:19], s46 offen')
        for i in range(8):
            a(f's_add_u32 s46, s42, {(ch*64 + 8*i)*896}')
            a(f'buffer_load_dwordx2 {vr(vbuf+2*i,2)}, v{vg}, s[16:19], s46 offen')
    kv_issue(0)
    for ch in range(4):
        a('s_waitcnt vmcnt(0)')
        for i in range(8):
            a(f'ds_write_b128 v{pl}, {vr(pbuf+4*i,4)} offset:{8*i*PRS}')
        for i in range(8):
            a(f'v_cndmask_b32 v{vbuf+2*i}, v{vbuf+2*i}, v{one}, s[44:45]')
            a(f'v_cndmask_b32 v{vbuf+2*i+1}, v{vbuf+2*i+1}, 0, s[44:45]')
            a(f'ds_write_b64 v{vl}, {vr(vbuf+2*i,2)} offset:{8*i*64}')
        a('s_waitcnt lgkmcnt(0)')
        if ch < 3:
            kv_issue(ch + 1)
        for ks in range(4):
            for half in range(2):
                a(f'ds_read_b64_tr_b16 {vr(vFrK+2*half,2)}, v{fa} offset:{(16*ks+4*half)*64}')
                a(f'ds_read_b64_tr_b16 {vr(vFrK+4+2*half,2)}, v{fb} offset:{(16*ks+4*half)*PRS}')
                a(f'ds_read_b64_tr_b16 {vr(vFrK+8+2*half,2)}, v{fb} offset:{(16*ks+4*half)*PRS + 64}')
            a('s_waitcnt lgkmcnt(0)')
            a(f'v_mfma_f32_32x32x16_bf16 {vr(vAcc,16)}, {vr(vFrK,4)}, {vr(vFrK+4,4)}, {vr(vAcc,16)}')
            a(f'v_mfma_f32_32x32x16_bf16 {vr(vAcc+16,16)}, {vr(vFrK,4)}, {vr(vFrK+8,4)}, {vr(vAcc+16,16)}')
    a.nop(16)
    a('s_barrier')
    tl = vT[0]; hh = vT[1]; bad = vT[3]
    a(f'v_and_b32 v{tl}, 31, v{vLane}')
    a(f'v_lshrrev_b32 v{hh}, 5, v{vLane}')
    a(f'v_lshlrev_b32 v{bad}, 2, v{tl}')
    a(f'v_lshl_add_u32 v{bad}, v{hh}, 10, v{bad}')
    a('s_lshl_b32 s40, s23, 13')
    a(f'v_add_u32 v{bad}, s40, v{bad}')
    for nt in range(2):
        for q in range(4):
            for i in range(4):
                a(f'ds_write_b32 v{bad}, v{vAcc+16*nt+4*q+i} offset:{(8*q+i)*256 + nt*128}')
    a('s_waitcnt lgkmcnt(0)')
    a('s_barrier')
    a(f'v_lshlrev_b32 v{bad}, 4, v0')
    for w in range(8):
        a(f'ds_read_b128 {vr(vE+4*w,4)}, v{bad} offset:{8192*w}')
    a('s_waitcnt lgkmcnt(0)')
    for w in range(1, 8):
        for j in range(4):
            a(f'v_add_f32 v{vE+j}, v{vE+j}, v{vE+4*w+j}')
    a(f'v_cvt_pk_bf16_f32 v{vE}, v{vE}, v{vE+1}')
    a(f'v_cvt_pk_bf16_f32 v{vE+1}, v{vE+2}, v{vE+3}')
    a(f'v_bfe_u32 v{vT[4]}, v0, 2, 2')
    a(f'v_bfe_u32 v{vT[5]}, v0, 1, 1')
    a(f'v_and_b32 v{vT[6]}, 1, v0')
    a(f'v_lshrrev_b32 v{vT[7]}, 4, v0')
    a(f'v_lshl_add_u32 v{vT[7]}, v{vT[5]}, 5, v{vT[7]}')
    a(f'v_lshlrev_b32 v{bad}, 4, v{vT[7]}')
    a(f'v_lshl_add_u32 v{bad}, v{vT[4]}, 10, v{bad}')
    a(f'v_lshl_add_u32 v{bad}, v{vT[6]}, 3, v{bad}')
    a('s_lshl_b32 s40, s20, 12')
    a(f's_add_u32 s40, s40, {WS_KVT}')
    a(f'buffer_store_dwordx2 {vr(vE,2)}, v{bad}, s[16:19], s40 offen')
    a.lab(END)
    stamp(a, 3)
    stamp_flush(a, 4, 1, vE)
    a.lab(END + '_x')
    a('s_endpgm')
    return name, R.hi, LDS

def gen_k3(a):
    name = 'k3_out_kernel'
    header(a, name)
    END = 'k3_end'
    O_RS = 912
    L_PH = 64*O_RS
    L_W = L_PH + 32768
    SLAB = 64*272
    LDS = L_W + 4*8192
    NB = 21
    a('s_cmp_ge_u32 s2, 224')
    a(f's_cbranch_scc1 {END}_x')
    a('s_load_dwordx2 s[24:25], s[0:1], 0')
    a('s_load_dwordx2 s[26:27], s[0:1], 24')
    a('s_load_dwordx4 s[28:31], s[0:1], 64')
    a('s_load_dwordx2 s[32:33], s[0:1], 88')
    stamp(a, 0)
    R = Regs(1)
    vLane = R.alloc()
    vT = [R.alloc() for _ in range(10)]
    vWg = R.alloc(); vUg = R.alloc()
    vAad = [R.alloc(), R.alloc()]; vBo = R.alloc(); vBu = R.alloc()
    vAcc = R.alloc(32, 4)
    vFr = R.alloc(12, 4)
    vE = R.alloc(96, 4)
    a(f'v_and_b32 v{vLane}, 63, v0')
    a(f'v_lshrrev_b32 v{vT[0]}, 6, v0')
    a('s_nop 0')
    a(f'v_readfirstlane_b32 s23, v{vT[0]}')
    a('s_and_b32 s20, s2, 7')
    a('s_lshl_b32 s20, s20, 2')
    a('s_lshr_b32 s21, s2, 3')
    a('s_and_b32 s34, s21, 3')
    a('s_add_u32 s20, s20, s34')
    a('s_lshr_b32 s21, s2, 5')
    l3 = vT[0]; l4 = vT[1]; l7 = vT[2]
    a(f'v_lshrrev_b32 v{l3}, 3, v{vLane}')
    a(f'v_lshrrev_b32 v{l4}, 4, v{vLane}')
    a(f'v_and_b32 v{l7}, 7, v{vLane}')
    tl = vT[3]; hh = vT[4]; ka = vT[5]
    a(f'v_and_b32 v{tl}, 31, v{vLane}')
    a(f'v_lshrrev_b32 v{hh}, 5, v{vLane}')
    a(f'v_lshlrev_b32 v{ka}, 4, v{vLane}')
    a('s_lshl_b32 s41, s20, 17')
    a('s_lshl_b32 s42, s23, 13')
    a('s_add_u32 s41, s41, s42')
    a(f's_add_u32 s41, s41, {WS_PHIQ}')
    a(f's_add_u32 s40, s42, {WS_KVT}')
    a('s_waitcnt lgkmcnt(0)')
    stamp(a, 4)
    srd(a, 16, 32, 33, WS_SIZE)
    for ah in range(2):
        base = vE + 48*ah
        for ks in range(4):
            a(f's_add_u32 s46, s40, {ah*4096 + ks*1024}')
            a(f'buffer_load_dwordx4 {vr(base+4*ks,4)}, v{ka}, s[16:19], s46 offen')
        for tt in range(2):
            for ks in range(4):
                a(f's_add_u32 s46, s41, {tt*65536 + ah*4096 + ks*1024}')
                a(f'buffer_load_dwordx4 {vr(base+16+16*tt+4*ks,4)}, v{ka}, s[16:19], s46 offen')
    srd(a, 4, 24, 25, S*D*2)
    srd(a, 8, 26, 27, D*D*2)
    srd(a, 12, 28, 29, FH*D*2)
    srd(a, 48, 30, 31, S*D*2)
    a(f'v_and_b32 v{vT[6]}, 1, v{l4}')
    a(f'v_lshlrev_b32 v{vT[6]}, 2, v{vT[6]}')
    a(f'v_xor_b32 v{vT[6]}, v{vT[6]}, v{l7}')
    a('s_lshl_b32 s34, s23, 3')
    a(f'v_add_u32 v{vT[7]}, s34, v{l3}')
    a(f'v_mul_u32_u24 v{vWg}, 896, v{vT[7]}')
    a(f'v_lshl_add_u32 v{vWg}, v{vT[6]}, 4, v{vWg}')
    a('s_lshl_b32 s34, s21, 7')
    a(f'v_add_u32 v{vWg}, s34, v{vWg}')
    a('s_lshl_b32 s34, s23, 2')
    a(f'v_add_u32 v{vT[6]}, s34, v{l4}')
    a(f'v_and_b32 v{vT[6]}, 7, v{vT[6]}')
    a(f'v_xor_b32 v{vT[6]}, v{vT[6]}, v{l7}')
    a(f'v_mul_u32_u24 v{vUg}, 1792, v{vT[7]}')
    a(f'v_lshl_add_u32 v{vUg}, v{vT[6]}, 4, v{vUg}')
    a(f's_mul_i32 s34, s20, {64*1792}')
    a(f's_add_u32 s34, s34, {WS_U}')
    a(f'v_add_u32 v{vUg}, s34, v{vUg}')
    a('s_lshl_b32 s47, s23, 10')
    def w_dma(blk):
        a(f's_add_u32 m0, s47, {L_W + (blk%4)*8192}')
        if blk < 7:
            a(f's_mov_b32 s36, {blk*64*896}')
            a(f'buffer_load_dwordx4 v{vWg}, s[8:11], s36 offen lds')
        else:
            a(f's_mov_b32 s36, {(blk-7)*64*896}')
            a(f'buffer_load_dwordx4 v{vWg}, s[12:15], s36 offen lds')
    def u_dma(blk):
        a(f's_add_u32 m0, s47, {L_PH + (blk%4)*8192}')
        a(f's_mov_b32 s36, {(blk-7)*128}')
        a(f'buffer_load_dwordx4 v{vUg}, s[16:19], s36 offen lds')
    for b in range(3):
        w_dma(b)
    oa = vT[8]
    a(f'v_mul_u32_u24 v{oa}, {O_RS}, v{tl}')
    a(f'v_lshl_add_u32 v{oa}, v{hh}, 3, v{oa}')
    a('s_mul_i32 s43, s23, 112')
    a(f'v_add_u32 v{oa}, s43, v{oa}')
    d0 = vT[5]; d1 = vT[6]; dn = vT[7]
    for ah in range(2):
        base = vE + 48*ah
        if ah == 0: stamp(a, 5)
        a(f's_waitcnt vmcnt({15 if ah == 0 else 3})')
        stamp(a, 6 + ah)
        for tt in range(2):
            for ks in range(4):
                cc_ = '0' if ks == 0 else vr(vAcc+16*tt, 16)
                a(f'v_mfma_f32_32x32x16_bf16 {vr(vAcc+16*tt,16)}, {vr(base+4*ks,4)}, {vr(base+16+16*tt+4*ks,4)}, {cc_}')
        a.nop(12)
        for tt in range(2):
            acc = vAcc + 16*tt
            a(f'v_mov_b32 v{d0}, v{acc+12}')
            a(f'v_mov_b32 v{d1}, v{acc+12}')
            a('s_nop 1')
            a(f'v_permlane32_swap_b32 v{d0}, v{d1}')
            a('s_nop 1')
            bf16_round(a, dn, d1)
            a(f'v_add_f32 v{dn}, {f2u(1e-6)}, v{dn}')
            bf16_round(a, dn, dn)
            a(f'v_rcp_f32 v{dn}, v{dn}')
            for j in range(8):
                a(f'v_cvt_pk_bf16_f32 v{d0}, v{acc+2*j}, v{acc+2*j+1}')
                a(f'v_lshlrev_b32 v{acc+2*j}, 16, v{d0}')
                a(f'v_and_b32 v{acc+2*j+1}, 0xffff0000, v{d0}')
            for j in range(16):
                a(f'v_mul_f32 v{acc+j}, v{acc+j}, v{dn}')
            for j in range(8):
                a(f'v_cvt_pk_bf16_f32 v{acc+j}, v{acc+2*j}, v{acc+2*j+1}')
            for q in range(4):
                if q == 3:
                    a('s_mov_b64 exec, 0xffffffff')
                a(f'ds_write_b64 v{oa}, {vr(acc+2*q,2)} offset:{tt*32*O_RS + ah*56 + q*16}')
                if q == 3:
                    a('s_mov_b64 exec, -1')
    G1, G2, rr, cc = vT[0], vT[1], vT[2], vT[3]
    a(f'v_bfe_u32 v{G1}, v{vLane}, 4, 1')
    a(f'v_lshrrev_b32 v{G2}, 5, v{vLane}')
    a(f'v_bfe_u32 v{rr}, v{vLane}, 2, 2')
    a(f'v_and_b32 v{cc}, 3, v{vLane}')
    a(f'v_lshl_add_u32 v{cc}, v{G1}, 2, v{cc}')
    a(f'v_lshrrev_b32 v{vT[4]}, 1, v{rr}')
    a(f'v_lshl_add_u32 v{rr}, v{G2}, 3, v{rr}')
    a(f'v_lshlrev_b32 v{rr}, 7, v{rr}')
    a(f'v_lshl_add_u32 v{rr}, v{cc}, 3, v{rr}')
    a('s_lshr_b32 s40, s23, 1')
    a('s_lshl_b32 s41, s40, 11')
    a(f's_add_u32 s41, s41, {L_W}')
    a(f'v_add_u32 v{rr}, s41, v{rr}')
    a(f'v_lshl_add_u32 v{vAad[0]}, v{vT[4]}, 6, v{rr}')
    a(f'v_xor_b32 v{vT[4]}, 1, v{vT[4]}')
    a(f'v_lshl_add_u32 v{vAad[1]}, v{vT[4]}, 6, v{rr}')
    a(f'v_and_b32 v{vT[4]}, 31, v{vLane}')
    a(f'v_lshrrev_b32 v{vT[5]}, 5, v{vLane}')
    a('s_and_b32 s41, s23, 1')
    a('s_lshl_b32 s41, s41, 5')
    a(f'v_add_u32 v{vT[4]}, s41, v{vT[4]}')
    a('s_lshl_b32 s42, s40, 5')
    a(f'v_mul_u32_u24 v{vBo}, {O_RS}, v{vT[4]}')
    a(f'v_lshl_add_u32 v{vBo}, v{vT[5]}, 4, v{vBo}')
    a(f'v_add_u32 v{vBo}, s42, v{vBo}')
    a('s_lshl_b32 s42, s40, 1')
    a(f'v_add_u32 v{vT[5]}, s42, v{vT[5]}')
    a(f'v_bfe_u32 v{vT[6]}, v{vT[4]}, 1, 3')
    a(f'v_xor_b32 v{vT[5]}, v{vT[5]}, v{vT[6]}')
    a(f'v_lshlrev_b32 v{vBu}, 7, v{vT[4]}')
    a(f'v_lshl_add_u32 v{vBu}, v{vT[5]}, 4, v{vBu}')
    a(f'v_add_u32 v{vBu}, {L_PH}, v{vBu}')
    for i in range(32):
        a(f'v_mov_b32 v{vAcc+i}, 0')
    xa = vT[9]; xv = vE
    a(f'v_lshrrev_b32 v{vT[4]}, 3, v0')
    a(f'v_and_b32 v{vT[5]}, 7, v0')
    a('s_lshl_b32 s41, s20, 6')
    a(f'v_add_u32 v{vT[6]}, s41, v{vT[4]}')
    a(f'v_mul_u32_u24 v{xa}, 896, v{vT[6]}')
    a(f'v_lshl_add_u32 v{xa}, v{vT[5]}, 4, v{xa}')
    a('s_lshl_b32 s52, s21, 7')
    a(f'buffer_load_dwordx4 {vr(xv,4)}, v{xa}, s[4:7], s52 offen')
    a('s_waitcnt lgkmcnt(0)')
    a('s_barrier')
    prio(a)
    stamp(a, 1)
    ops = []
    ops += [('x', -1)]
    issued = [('w', 0), ('w', 1), ('w', 2), ('x', -1)]
    for blk in range(NB):
        nb = blk + 3
        if nb < NB:
            w_dma(nb); issued.append(('w', nb))
            if nb >= 7:
                u_dma(nb); issued.append(('u', nb))
        if blk == 0:
            later = len([1 for (k, b) in issued[issued.index(('w', 0))+1:]])
            a(f's_waitcnt vmcnt({later})')
            a('s_barrier')
        for i in range(2):
            for half in range(2):
                a(f'ds_read_b64_tr_b16 {vr(vFr+4*i+2*half,2)}, v{vAad[i]} offset:{(blk%4)*8192 + 4*half*128}')
        if blk < 7:
            a(f'ds_read_b128 {vr(vFr+8,4)}, v{vBo} offset:{blk*128}')
        else:
            a(f'ds_read_b128 {vr(vFr+8,4)}, v{vBu} offset:{(blk%4)*8192}')
        a('s_waitcnt lgkmcnt(0)')
        for i in range(2):
            a(f'v_mfma_f32_32x32x16_bf16 {vr(vAcc+16*i,16)}, {vr(vFr+4*i,4)}, {vr(vFr+8,4)}, {vr(vAcc+16*i,16)}')
        if blk + 1 < NB:
            last = max(idx for idx, (k, b) in enumerate(issued) if b == blk + 1)
            a(f's_waitcnt vmcnt({len(issued) - 1 - last})')
            a('s_barrier')
    stamp(a, 2)
    a.nop(8)
    a('s_barrier')
    wa = vT[0]; ra = vT[1]
    a(f'v_and_b32 v{vT[2]}, 31, v{vLane}')
    a(f'v_mul_u32_u24 v{wa}, 272, v{vT[2]}')
    a(f'v_lshrrev_b32 v{vT[2]}, 5, v{vLane}')
    a(f'v_lshl_add_u32 v{wa}, v{vT[2]}, 4, v{wa}')
    a(f's_mul_i32 s41, s40, {SLAB}')
    a('s_and_b32 s42, s23, 1')
    a(f's_mul_i32 s42, s42, {32*272}')
    a('s_add_u32 s41, s41, s42')
    a(f'v_add_u32 v{wa}, s41, v{wa}')
    for ii in range(2):
        for q in range(4):
            a(f'ds_write_b128 v{wa}, {vr(vAcc+16*ii+4*q,4)} offset:{(32*ii+8*q)*4}')
    a(f'v_mul_u32_u24 v{ra}, 272, v{vT[4]}')
    a(f'v_lshl_add_u32 v{ra}, v{vT[5]}, 5, v{ra}')
    a('s_waitcnt lgkmcnt(0)')
    a('s_barrier')
    g = vE + 8
    for kg in range(4):
        for h2 in range(2):
            a(f'ds_read_b128 {vr(g+8*kg+4*h2,4)}, v{ra} offset:{kg*SLAB + h2*16}')
    a('s_waitcnt vmcnt(0) lgkmcnt(0)')
    for kg in range(1, 4):
        for e in range(8):
            a(f'v_add_f32 v{g+e}, v{g+e}, v{g+8*kg+e}')
    t0 = vT[6]
    for e in range(4):
        xx = xv + e
        a(f'v_lshlrev_b32 v{t0}, 16, v{xx}')
        a(f'v_and_b32 v{xx}, 0xffff0000, v{xx}')
        a(f'v_add_f32 v{g+2*e}, v{g+2*e}, v{t0}')
        a(f'v_add_f32 v{g+2*e+1}, v{g+2*e+1}, v{xx}')
        a(f'v_cvt_pk_bf16_f32 v{xx}, v{g+2*e}, v{g+2*e+1}')
    a(f'buffer_store_dwordx4 {vr(xv,4)}, v{xa}, s[48:51], s52 offen')
    a.lab(END)
    stamp(a, 3)
    stamp_flush(a, 8, 2, vE)
    a.lab(END + '_x')
    a('s_endpgm')
    return name, R.hi, LDS

def main():
    a = Asm()
    SF = os.environ.get('STORE_FLAGS', '')
    infos = []
    infos.append(gen_k1(a) + (224,))
    infos.append(gen_k2(a) + (240,))
    infos.append(gen_k3(a) + (224,))
    out = []
    for n, nv, lds, g in infos:
        out.append(f'; @launch kernel={n} grid=({g},1,1) block=(512,1,1) lds={lds}')
    out.append('.amdgcn_target "amdgcn-amd-amdhsa--gfx950"')
    out.append('.text')
    for l in a.L:
        if SF and 'buffer_store' in l and 's[16:19]' in l:
            l = l + ' ' + SF
        out.append(l)
    out.append('.section .rodata,"a"')
    for n, nv, lds, g in infos:
        out.append('.p2align 6')
        out.append(descriptor(n, nv))
    open(sys.argv[1] if len(sys.argv) > 1 else 'parallel_sum__linear_kernel_hedgehog__mixer_gmlp__prompt.s', 'w').write('\n'.join(out) + '\n')
    for i in infos: print(i, file=sys.stderr)

main()
```
